```python
import torch

def _softmax(x, axis=-1):
    return torch.softmax(x, dim=axis)

def _gelu(x):
    return torch.nn.functional.gelu(x, approximate='tanh')

def _silu(x):
    return torch.nn.functional.silu(x)

def _sigmoid(x):
    return torch.sigmoid(x)

def _layernorm(x, axis=-1, eps=1e-05):
    m = x.mean(dim=axis, keepdim=True)
    v = x.var(dim=axis, keepdim=True, unbiased=False)
    return (x - m) / torch.sqrt(v + eps)

def _scatter_add(tgt, idx, src, axis=0):
    return tgt.clone().index_add_(axis, idx, src)

def _segment_sum(src, seg, n):
    out = torch.zeros((n,) + src.shape[1:], dtype=src.dtype)
    return out.index_add_(0, seg, src)

def _pad(x, pw):
    flat = tuple((v for pair in reversed(pw) for v in pair))
    return torch.nn.functional.pad(x, flat)
kernel_name = 'gated_mix__memory_aug_recurrent_mem_tr__geglu_ffn__prompt'

def setup_inputs():

    _w = lambda a: (lambda t: t.to(torch.bfloat16) if t.is_floating_point() else t)(torch.as_tensor(a))

    def _A_setup():
        B, S, Dm = (1, 2048, 512)
        H, Dh = (32, 128)
        M, seg = (8, 32)
        seg = min(seg, S)
        S = S // seg * seg
        return {'x': _w((lambda *s: torch.randn(*s, dtype=torch.bfloat16) * 0.05)(B, S, Dm)), 'mem0': _w((lambda *s: torch.randn(*s, dtype=torch.bfloat16) * 0.4)(B, M, Dm)), 'Wq': _w((lambda *s: torch.randn(*s, dtype=torch.bfloat16) * 6.4)(Dm, H, Dh) * Dm ** (-0.5)), 'Wk': _w((lambda *s: torch.randn(*s, dtype=torch.bfloat16) * 6.4)(Dm, H, Dh) * Dm ** (-0.5)), 'Wv': _w((lambda *s: torch.randn(*s, dtype=torch.bfloat16) * 0.4)(Dm, H, Dh) * Dm ** (-0.5)), 'Wo': _w((lambda *s: torch.randn(*s, dtype=torch.bfloat16) * 0.4)(H, Dh, Dm) * (H * Dh) ** (-0.5)), 'seg_len': seg}
    _A_in = _A_setup()

    def _B_setup():
        B, S, D, F = (1, 2048, 512, 1792)
        return {'x': _w((lambda *s: torch.randn(*s, dtype=torch.bfloat16) * 0.05)(B, S, D)), 'w_gate': _w((lambda *s: torch.randn(*s, dtype=torch.bfloat16) * 0.05)(D, F)), 'w_up': _w((lambda *s: torch.randn(*s, dtype=torch.bfloat16) * 0.05)(D, F)), 'w_down': _w((lambda *s: torch.randn(*s, dtype=torch.bfloat16) * 0.05)(F, D))}
    _B_in = _B_setup()
    return {'A_x': _A_in['x'], 'A_mem0': _A_in['mem0'], 'A_Wq': _A_in['Wq'], 'A_Wk': _A_in['Wk'], 'A_Wv': _A_in['Wv'], 'A_Wo': _A_in['Wo'], 'A_seg_len': _A_in['seg_len'], 'B_x': _B_in['x'], 'B_w_gate': _B_in['w_gate'], 'B_w_up': _B_in['w_up'], 'B_w_down': _B_in['w_down'], 'gate_w': _w((lambda *s: torch.randn(*s, dtype=torch.bfloat16) * 0.05)(512) * 16.0)}

def reference(A_x, A_mem0, A_Wq, A_Wk, A_Wv, A_Wo, A_seg_len, B_x, B_w_gate, B_w_up, B_w_down, gate_w):

    def _A_ref(x, mem0, Wq, Wk, Wv, Wo, seg_len):
        B, S, Dm = x.shape
        H, Dh = (Wq.shape[1], Wq.shape[2])
        M = mem0.shape[1]
        scale = Dh ** (-0.5)
        n_seg = S // seg_len
        L = M + seg_len
        idx = torch.arange(L)
        mask = (idx[:, None] < M) | (idx[:, None] >= idx[None, :])
        mem = mem0
        outs = []
        for s in range(n_seg):
            xs = x[:, s * seg_len:(s + 1) * seg_len, :].clone()
            h = torch.concatenate([mem, xs], axis=1)
            q = torch.einsum('btd,dhe->bhte', h, Wq)
            k = torch.einsum('btd,dhe->bhte', h, Wk)
            v = torch.einsum('btd,dhe->bhte', h, Wv)
            scores = torch.einsum('bhqe,bhke->bhqk', q, k) * scale
            scores = torch.where(mask[None, None], scores, -1000000000.0)
            p = _softmax(scores, axis=-1)
            o = torch.einsum('bhqk,bhke->bhqe', p, v)
            o = torch.einsum('bhte,hed->btd', o, Wo)
            mem = o[:, :M, :].clone()
            outs.append(o[:, M:, :])
        return torch.concatenate(outs, axis=1)

    def _B_ref(x, w_gate, w_up, w_down):
        return _gelu(x @ w_gate) * (x @ w_up) @ w_down
    x = A_x
    g = _sigmoid((x * gate_w).sum(-1, keepdims=True))
    a = _A_ref(x, A_mem0, A_Wq, A_Wk, A_Wv, A_Wo, A_seg_len)
    b = _B_ref(x, B_w_gate, B_w_up, B_w_down)
    return g * a + (1 - g) * b
```

```python
import re


def vr(i, n=1):
    return f"v{i}" if n == 1 else f"v[{i}:{i+n-1}]"


def ar(i, n=1):
    return f"a{i}" if n == 1 else f"a[{i}:{i+n-1}]"


def sr(i, n=1):
    return f"s{i}" if n == 1 else f"s[{i}:{i+n-1}]"


_REG = re.compile(r"^(-|\|)?(?:abs\()?([vas])(?:(\d+)|\[(\d+):(\d+)\])\)?\|?$")
TRANS = ("v_exp_f32", "v_log_f32", "v_rcp_f32", "v_rsq_f32", "v_sqrt_f32", "v_sin_f32", "v_cos_f32")


def regs_of(tok):
    tok = tok.strip()
    if tok == "vcc":
        return {("s", 106), ("s", 107)}
    if tok == "exec":
        return {("s", 126), ("s", 127)}
    if tok == "m0":
        return {("s", 124)}
    m = _REG.match(tok)
    if not m:
        return set()
    k = m.group(2)
    if m.group(3) is not None:
        return {(k, int(m.group(3)))}
    return {(k, i) for i in range(int(m.group(4)), int(m.group(5)) + 1)}


class Ins:
    __slots__ = ("text", "mn", "ops", "mods", "w", "r", "kind", "note", "mf")

    def __init__(self, text):
        self.text = text
        body, _, note = text.partition(";")
        self.note = note.strip()
        body = body.strip()
        mn, _, rest = body.partition(" ")
        self.mn = mn
        parts = [p.strip() for p in re.split(r",(?![^\[]*\])", rest)] if rest.strip() else []
        mods = ""
        if parts:
            last = parts[-1].split(None, 1)
            if len(last) == 2 and not mn.startswith("s_waitcnt"):
                parts[-1], mods = last
        self.ops, self.mods = parts, mods
        self.w, self.r, self.mf = set(), set(), None
        self._classify()

    def _classify(self):
        mn, o = self.mn, self.ops
        R = [regs_of(x) for x in o]
        allr = lambda xs: set().union(*xs) if xs else set()
        if mn.startswith("v_mfma") or mn.startswith("v_smfmac"):
            self.kind = "mfma"
            passes = 8 if "32x32" in mn else 4
            if mn.startswith("v_smfmac"):
                self.mf = dict(d=R[0], ab=R[1] | R[2] | R[3], c=R[0], passes=passes)
            else:
                self.mf = dict(d=R[0], ab=R[1] | R[2], c=R[3], passes=passes)
            self.w = R[0]
            self.r = self.mf["ab"] | self.mf["c"]
        elif mn.startswith("v_"):
            self.kind = "valu"
            self.w = set(R[0])
            self.r = allr(R[1:])
            if mn.startswith("v_permlane") and "swap" in mn:
                self.w = R[0] | R[1]
                self.r = R[0] | R[1]
            if mn.startswith(("v_fmac", "v_dot2c", "v_writelane", "v_pk_fmac")) or "_dpp" in mn:
                self.r |= R[0]
            if mn.startswith(("v_add_co", "v_sub_co", "v_addc_co", "v_subb_co")):
                self.w |= R[1]
                self.r = allr(R[2:])
            if mn.startswith("v_cmpx"):
                self.w |= regs_of("exec")
        elif mn.startswith("ds_"):
            self.kind = "ds"
            if mn.startswith(("ds_read", "ds_bpermute", "ds_permute", "ds_swizzle")):
                self.w = R[0]
                self.r = allr(R[1:])
            else:
                self.r = allr(R)
        elif mn.startswith(("buffer_", "global_")):
            self.kind = "vmem"
            lds = " lds" in (" " + self.mods) or "_lds_" in mn
            if mn.startswith(("buffer_wbl2", "buffer_inv")):
                pass
            elif lds:
                self.r = allr(R) | regs_of("m0")
            elif "_load" in mn:
                self.w = R[0]
                self.r = allr(R[1:])
            elif "atomic" in mn and "sc0" in self.mods:
                self.w = R[0]
                self.r = allr(R) if mn.startswith("buffer") else allr(R[1:])
            else:
                self.r = allr(R)
        elif mn.startswith(("s_load", "s_memtime", "s_memrealtime", "s_buffer_load")):
            self.kind = "smem"
            self.w = R[0]
            self.r = allr(R[1:])
        elif mn.startswith("s_"):
            self.kind = "salu"
            if mn.startswith(("s_cmp", "s_bitcmp", "s_cbranch", "s_branch", "s_waitcnt", "s_barrier", "s_nop",
                              "s_setprio", "s_sleep", "s_endpgm")):
                self.r = allr(R)
            else:
                self.w = set(R[0]) if R else set()
                self.r = allr(R[1:])
                if "saveexec" in mn:
                    self.w |= regs_of("exec")
        else:
            raise ValueError("unknown instruction: " + self.text)

    def states(self):
        return int(self.ops[0], 0) + 1 if self.mn == "s_nop" else 1

    def store_data(self):
        if self.kind == "vmem" and re.search(r"store_dwordx[34]", self.mn):
            return regs_of(self.ops[0] if self.mn.startswith("buffer") else self.ops[1])
        return set()


def isv(x):
    return {r for r in x if r[0] in "va"}


def iss(x):
    return {r for r in x if r[0] == "s"}


def need(p, c):
    n = 0
    if p.kind == "valu":
        wv, ws = isv(p.w), iss(p.w)
        if c.kind == "mfma" and wv & c.r:
            n = max(n, 2)
        if c.kind == "valu":
            if wv & c.r:
                if c.mn.startswith("v_permlane") or "_dpp" in c.mn:
                    n = max(n, 2)
                if c.mn.startswith(("v_readlane", "v_readfirstlane")):
                    n = max(n, 1)
                if p.mn.startswith(TRANS) and not c.mn.startswith(TRANS):
                    n = max(n, 1)
            if p.mn.startswith("v_dot") and wv & (c.r | c.w):
                same_acc = c.mn == p.mn and not (wv & set().union(*[regs_of(x) for x in c.ops[1:3]]))
                if not same_acc:
                    n = max(n, 3)
            if ws & c.r:
                n = max(n, 4 if c.mn.startswith(("v_readlane", "v_writelane")) else 2)
        if p.mn.startswith("v_dot") and c.kind in ("vmem", "ds", "mfma") and wv & c.r:
            n = max(n, 3)
        if c.kind == "vmem" and ws & c.r:
            n = max(n, 5)
        if c.kind == "salu" and ws & c.r and not c.mn.startswith("s_cbranch"):
            n = max(n, 1)
        if regs_of("exec") & p.w and c.kind in ("mfma", "valu"):
            n = max(n, 5)
    if p.kind == "mfma":
        d, ps = p.mf["d"], p.mf["passes"]
        full = 8 if ps == 4 else 12
        if c.kind == "mfma":
            if d & c.mf["ab"]:
                n = max(n, full)
            if d & c.mf["c"] and not (d == c.mf["c"] and p.mn == c.mn):
                n = max(n, full - 2)
            if d & c.mf["d"] and not (d & c.mf["c"]):
                n = max(n, full - 2 if d != c.mf["d"] or ps != c.mf["passes"] else 0)
        elif c.kind in ("valu", "vmem", "ds"):
            if d & (c.r | c.w):
                n = max(n, full)
            if c.kind == "valu" and p.mf["c"] & c.w:
                n = max(n, 3 if ps == 4 else 7)
    if p.kind == "salu" and ("s", 124) in p.w and c.kind == "vmem" and ("s", 124) in c.r:
        n = max(n, 1)
    sd = p.store_data()
    if sd and sd & c.w:
        n = max(n, 2 if c.kind in ("valu", "mfma") else 1)
    return n


class Asm:
    def __init__(self):
        self.items = []
        self._uid = 0
        self.inject, self.ordinal = {}, 0
        self.skip = set()

    def __call__(self, text):
        for line in text.split("\n"):
            s = line.strip()
            if not s or s in self.skip:
                continue
            if s.startswith(("WAITL ", "WAITV ")):
                self._wait_for(s[:5], s[6:].strip())
            elif s.startswith(";") or s.startswith("."):
                self.items.append(("raw", s))
            elif re.match(r"^[\w.$]+:$", s):
                self.items.append(("label", s[:-1]))
            else:
                for x in self.inject.pop(self.ordinal, ()):
                    self.items.append(("ins", Ins(x)))
                self.ordinal += 1
                self.items.append(("ins", Ins(s)))

    def _wait_for(self, kind, text):
        cls = "ds" if kind == "WAITL" else "vmem"
        if text in self.skip:
            return
        name, cap = ("lgkmcnt", 15) if cls == "ds" else ("vmcnt", 63)
        n, seen = 0, []
        for k, x in reversed(self.items):
            if k != "ins":
                continue
            if x.text.strip() == text:
                break
            n += x.kind == cls
            m = re.search(name + r"\((\d+)\)", x.text) if x.mn == "s_waitcnt" else None
            if m:
                seen.append((n, int(m.group(1))))
        else:
            raise ValueError("no such instruction: " + text)
        if not any(cnt <= n - after for after, cnt in seen):
            self(f"s_waitcnt {name}({min(n, cap)})")

    def uid(self, p="L"):
        self._uid += 1
        return f"{p}_{self._uid}"

    def nops(self, cycles):
        n = cycles // 4
        while n > 0:
            k = min(n, 16)
            self(f"s_nop {k-1}")
            n -= k

    def _cfg(self):
        idx = [i for i, it in enumerate(self.items) if it[0] == "ins"]
        nxt = {}
        pos = {}
        k = len(idx)
        for i in range(len(self.items) - 1, -1, -1):
            if self.items[i][0] == "ins":
                k -= 1
            pos[i] = k
        labels = {it[1]: pos[i] for i, it in enumerate(self.items) if it[0] == "label"}
        ins = [self.items[i][1] for i in idx]
        for j, x in enumerate(ins):
            if x.mn == "s_endpgm":
                nxt[j] = []
            elif x.mn == "s_branch":
                nxt[j] = [labels[x.ops[0]]]
            elif x.mn.startswith("s_cbranch"):
                nxt[j] = [j + 1, labels[x.ops[0]]]
            else:
                nxt[j] = [j + 1]
            nxt[j] = [t for t in nxt[j] if t < len(ins)]
        return idx, ins, nxt

    def pad_hazards(self, verbose=False):
        total = 0
        for _ in range(50):
            idx, ins, nxt = self._cfg()
            fix = {}
            for j, p in enumerate(ins):
                if p.kind not in ("valu", "mfma", "salu", "vmem"):
                    continue
                if p.kind == "salu" and ("s", 124) not in p.w:
                    continue
                if p.kind == "vmem" and not p.store_data():
                    continue
                lim = 12 if p.kind == "mfma" else 5
                stack = [(t, 0) for t in nxt[j]]
                seen = {}
                while stack:
                    t, d = stack.pop()
                    if d >= lim or seen.get(t, 99) <= d:
                        continue
                    seen[t] = d
                    c = ins[t]
                    n = need(p, c)
                    if n > d:
                        if fix.get(t, (0,))[0] < n - d:
                            fix[t] = (n - d, p.text)
                    for u in nxt[t]:
                        stack.append((u, d + c.states()))
            if not fix:
                return total
            first = min(fix)
            done = 0
            for t in sorted(fix, reverse=True):
                if any(0 < t - u <= 12 for u in fix):
                    continue
                n, why = fix[t]
                if verbose:
                    print(f"pad {n} before [{ins[t].text}] after [{why}]")
                self.items.insert(idx[t], ("ins", Ins(f"s_nop {n-1}")))
                total += n
                done += 1
            assert done
        raise RuntimeError("hazard padding did not converge")

    def check_waits(self, entries=(0,), max_visits=3):
        idx, ins, nxt = self._cfg()
        problems = set()
        visits = {}
        stack = [(e, (), ()) for e in entries]
        while stack:
            j, vm, lg = stack.pop()
            while True:
                key = (j, vm, lg)
                if key in visits:
                    break
                cnt = visits.get(j, 0)
                if cnt >= max_visits:
                    break
                visits[j] = cnt + 1
                visits[key] = 1
                x = ins[j]
                if "nocheck" not in x.note:
                    touched = x.r | x.w
                    for q in vm + lg:
                        pend = ins[q].w
                        if pend & touched and not (x.kind == ins[q].kind and not (pend & x.r) and x.kind != "smem"):
                            problems.add(f"[{x.text}] touches pending result of [{ins[q].text}]")
                    if x.mn == "s_barrier":
                        for q in lg:
                            if ins[q].kind == "ds" and not ins[q].w:
                                problems.add(f"barrier #{j} with outstanding [{ins[q].text}]")
                if x.mn == "s_waitcnt":
                    t = x.text.split(";")[0]
                    m = re.search(r"vmcnt\((\d+)\)", t)
                    if m:
                        n = int(m.group(1))
                        vm = vm[len(vm) - n:] if n and len(vm) > n else (vm if n else ())
                    m = re.search(r"lgkmcnt\((\d+)\)", t)
                    if m:
                        n = int(m.group(1))
                        if n and any(ins[q].kind == "smem" for q in lg):
                            problems.add(f"counted lgkm wait with smem in flight: #{j} {x.text}")
                        lg = lg[len(lg) - n:] if n and len(lg) > n else (lg if n else ())
                elif x.kind == "vmem" and not x.mn.startswith(("buffer_wbl2", "buffer_inv")):
                    vm = (vm + (j,))[-64:]
                elif x.kind in ("ds", "smem"):
                    lg = lg + (j,)
                    if len(lg) > 40:
                        lg = lg[-40:]
                s = nxt[j]
                if not s:
                    break
                for t in s[1:]:
                    stack.append((t, vm, lg))
                j = s[0]
        return sorted(problems)

    def align8(self):
        import subprocess, tempfile, os
        with tempfile.TemporaryDirectory() as d:
            open(d + "/a.s", "w").write('.amdgcn_target "amdgcn-amd-amdhsa--gfx950"\n.text\n' + self.text())
            subprocess.run(["clang", "-x", "assembler", "-target", "amdgcn-amd-amdhsa", "-mcpu=gfx950", "-c",
                            d + "/a.s", "-o", d + "/a.o"], check=True)
            dis = subprocess.run(["llvm-objdump", "-d", "--mcpu=gfx950", d + "/a.o"], check=True,
                                 capture_output=True, text=True).stdout
        sizes = [4 * len(m.group(1).split()) for m in re.finditer(r"// [0-9A-F]+:((?: [0-9A-F]{8})+)", dis)]
        idx = [i for i, it in enumerate(self.items) if it[0] == "ins"]
        assert len(sizes) == len(idx), (len(sizes), len(idx))
        WIDE = ("v_add_f32", "v_sub_f32", "v_mul_f32", "v_max_f32", "v_max_u32", "v_exp_f32", "v_rcp_f32", "v_mov_b32", "v_mov_b64",
                "v_add_u32", "v_lshlrev_b32", "v_lshrrev_b32", "v_and_b32", "v_xor_b32", "v_cmp_eq_u32", "v_cmp_u_f32", "v_cmp_ne_u32")
        INF = 1 << 30
        best = [(0, None), (INF, None)]
        back = []
        for i, sz in zip(idx, sizes):
            x = self.items[i][1]
            opts = [(sz, 0)]
            if sz == 4 and x.mn in WIDE:
                opts.append((8, 1))
            if x.mn == "s_nop" and int(x.ops[0], 0) >= 1:
                opts.append((8, 2))
            nb, bk = [INF, INF], [None, None]
            for par in (0, 1):
                if best[par][0] >= INF:
                    continue
                for size, how in opts:
                    c = best[par][0] + (4 if size >= 8 and par and how != 2 else 0) + (1 if how else 0)
                    np_ = (par + size // 4) & 1
                    if c < nb[np_]:
                        nb[np_], bk[np_] = c, (par, how)
            best = [(nb[0], None), (nb[1], None)]
            back.append(bk)
        par = 0 if best[0][0] <= best[1][0] else 1
        total = best[par][0]
        for i, bk in zip(reversed(idx), reversed(back)):
            par, how = bk[par]
            x = self.items[i][1]
            if how == 1:
                self.items[i] = ("ins", Ins(x.text.replace(x.mn, x.mn + "_e64", 1)))
            elif how == 2:
                n = int(x.ops[0], 0)
                self.items[i:i + 1] = [("ins", Ins("s_nop 0")), ("ins", Ins(f"s_nop {n - 1}"))]
        return total

    def text(self):
        out = []
        for k, x in self.items:
            if k == "label":
                out.append(x + ":")
            elif k == "raw":
                out.append(x)
            else:
                out.append("  " + x.text.split(";")[0].rstrip())
        return "\n".join(out) + "\n"

    def count(self):
        return sum(1 for k, _ in self.items if k == "ins")
```

```python
import math
import struct
from asmlib import vr, ar, sr

NAME = "gated_mix__memory_aug_recurrent_mem_tr__geglu_ffn__prompt"

KX, VX, KM, HX = 0x0000, 0x0800, 0x4000, 0x6000
QX, PART = 0x4000000, 0x5000000
RP, RM, TICK = 0x9600000, 0x9080000, 0x9090000
FKV, FM, FP = 0x9100000, 0x9108000, 0x910C000
TRACE = 0x9200000
WS_BYTES = 0x10000000
OOB = 0x40000000

P_X, P_MEM0, P_WQ, P_WK, P_WV, P_WO, P_WG, P_WU, P_WD, P_GW, P_OUT, P_DBG, P_WS = (
    40, 42, 44, 46, 48, 50, 56, 58, 60, 62, 64, 66, 68)
SRD_WS, SRD_A, SRD_B, SRD_C = 4, 8, 12, 16
S_H, S_W, S_SUB, S_TO, S_T0, S_T1, S_T2, S_T3 = 20, 21, 22, 23, 24, 25, 26, 27
POLL_LIMIT = 0x40000


def f32(x):
    return hex(struct.unpack("<I", struct.pack("<f", x))[0])


LOG2E = math.log2(math.e)
C_EXP = f32(128 ** -0.5 * LOG2E)


def srd(a, dst, ptr, nbytes):
    a(f"s_mov_b32 s{dst}, s{ptr}")
    a(f"s_mov_b32 s{dst+1}, s{ptr+1}")
    a(f"s_mov_b32 s{dst+2}, {hex(nbytes)}")
    a(f"s_mov_b32 s{dst+3}, 0x20000")


def timeout(a, back):
    a(f"s_add_u32 s{S_TO}, s{S_TO}, 1")
    a(f"s_cmp_lt_u32 s{S_TO}, {hex(POLL_LIMIT)}")
    a(f"s_cbranch_scc1 {back}")
    a("s_branch L_exit")


def wait_all_arrived(a, vt):
    L = a.uid("L_arr")
    srd(a, SRD_C, P_DBG, 256)
    a(f"{L}:")
    a(f"buffer_load_dword {vr(vt)}, off, {sr(SRD_C,4)}, 0 sc1")
    a("s_waitcnt vmcnt(0)")
    a(f"v_readfirstlane_b32 s{S_T0}, {vr(vt)}")
    a(f"s_cmp_ge_u32 s{S_T0}, 256")
    a(f"s_cbranch_scc1 {L}_ok")
    a("s_sleep 2")
    timeout(a, L)
    a(f"{L}_ok:")


def arrive(a, vt, offset=0):
    L = a.uid("L_noarr")
    srd(a, SRD_C, P_DBG, 256)
    a(f"s_cmp_lg_u32 s{S_W}, 0")
    a(f"s_cbranch_scc1 {L}")
    a(f"v_mov_b32 {vr(vt)}, 1")
    a("s_mov_b64 exec, 1")
    a(f"buffer_atomic_add {vr(vt)}, off, {sr(SRD_C,4)}, 0 offset:{offset}")
    a("s_mov_b64 exec, -1")
    a(f"{L}:")


def stage(a, n, nslots, issue, consume, after_barrier=None, meanwhile=None, extra=0, throttle=None):
    for c in range(min(nslots - 1, n)):
        issue(c)
    if meanwhile:
        meanwhile()
    for c in range(n):
        a(f"s_waitcnt vmcnt({4 * min(nslots - 2, n - 1 - c) + (extra if c < nslots - 1 else 0)})")
        a("s_barrier")
        if c + nslots - 1 < n and not throttle:
            issue(c + nslots - 1)
        if after_barrier:
            after_barrier(c)
        consume(c)
        if c + nslots - 1 < n and throttle:
            throttle()
            issue(c + nslots - 1)
        a("s_waitcnt lgkmcnt(0)")


TRACE_ON = [False, False]


def mark(a, i, vt, sreg=None, dbg_base=1, per=None):
    if TRACE_ON[0] == 2 and sreg is None and per is None:
        L = a.uid("L_mk")
        a(f"s_cmp_lg_u32 s{S_W}, 0")
        a(f"s_cbranch_scc1 {L}")
        if i + dbg_base != 12:
            a("s_and_b32 s36, s2, 0x7e")
            a("s_cmp_lg_u32 s36, 0")
            a(f"s_cbranch_scc1 {L}")
        a("s_memrealtime s[36:37]")
        a("s_waitcnt lgkmcnt(0)")
        a(f"v_mov_b32 {vr(vt)}, s36")
        a(f"v_mov_b32 {vr(vt + 1)}, {4 * (i + dbg_base)}")
        a("s_mov_b64 exec, 1")
        a(f"global_atomic_umax {vr(vt + 1)}, {vr(vt)}, s[{P_DBG}:{P_DBG + 1}]")
        a("s_mov_b64 exec, -1")
        a(f"{L}:")
        return
    if TRACE_ON[0] != 1 or (per is not None and not TRACE_ON[1]):
        return
    if sreg is None:
        a("s_memrealtime s[36:37]")
        a("s_waitcnt lgkmcnt(0)")
        sreg = 36
    a(f"v_mov_b32 {vr(vt)}, s{sreg}")
    a("s_lshl_b32 s38, s2, 2")
    a(f"s_add_u32 s38, s38, s{S_W}")
    a("s_lshl_b32 s38, s38, 8")
    a(f"s_add_u32 s38, s38, {hex(TRACE + 4 * i)}")
    if per is not None:
        a(f"s_mul_i32 s37, s{per}, 12")
        a("s_add_u32 s38, s38, s37")
    a("s_mov_b64 exec, 1")
    a(f"buffer_store_dword {vr(vt)}, off, {sr(SRD_WS,4)}, s38")
    a("s_mov_b64 exec, -1")
```

```python
from asmlib import vr, ar, sr
from common import *

XB, XSTR = 0, 33280
GB = 0x10400
STG = 0x10C00
S_SEG, S_NSEG, S_I, S_XCUR, S_W1K, S_OFF, S_FFN, S_XN = 28, 29, 30, 31, 32, 33, 34, 35
S_MASK = 70

V_LANE, V_L16, V_L16W, V_DMA, V_TR, V_XF, V_XC, V_GU0, V_GU1, V_TRG, V_T0, V_T1, V_T2, V_T3, V_FL, V_G = range(1, 17)
V_XG, V_GC, V_KM, V_VM, V_RD, V_OUT, V_KP = range(17, 24)
XF = 24
GW = 96
T0, T1 = 64, 80
PK = 40
SENT = 56


def lane_setup(a):
    l = vr(V_LANE)
    a(f"v_and_b32 {l}, 63, v0")
    a(f"v_lshlrev_b32 {vr(V_L16)}, 4, {l}")
    a(f"s_lshl_b32 s{S_W1K}, s{S_W}, 10")
    a(f"v_add_u32 {vr(V_L16W)}, s{S_W1K}, {vr(V_L16)}")
    t0, t1, t2, t3 = (vr(x) for x in (V_T0, V_T1, V_T2, V_T3))
    a(f"v_lshrrev_b32 {t0}, 4, {l}")
    a(f"v_and_b32 {t1}, 15, {l}")
    a(f"v_lshlrev_b32 {t2}, 2, {t0}")
    a(f"v_xor_b32 {t1}, {t1}, {t2}")
    a(f"v_lshlrev_b32 {t1}, 4, {t1}")
    a(f"s_lshl_b32 s{S_T0}, s{S_W}, 2")
    a(f"v_add_u32 {t0}, s{S_T0}, {t0}")
    a(f"v_lshl_add_u32 {vr(V_DMA)}, {t0}, 13, {t1}")
    a(f"v_bfe_u32 {t0}, {l}, 2, 2")
    a(f"v_bfe_u32 {t1}, {l}, 4, 1")
    a(f"v_bfe_u32 {t2}, {l}, 1, 1")
    a(f"v_lshl_add_u32 {t3}, {t1}, 1, {t2}")
    a(f"v_add_u32 {t3}, s{S_T0}, {t3}")
    a(f"v_lshlrev_b32 {vr(V_TR)}, 2, {t0}")
    a(f"v_xor_b32 {t3}, {t3}, {vr(V_TR)}")
    a(f"v_lshlrev_b32 {t3}, 4, {t3}")
    a(f"v_lshrrev_b32 {vr(V_TR)}, 5, {l}")
    a(f"v_lshl_add_u32 {vr(V_TR)}, {vr(V_TR)}, 3, {t0}")
    a(f"v_lshl_add_u32 {vr(V_TR)}, {vr(V_TR)}, 8, {t3}")
    a(f"v_and_b32 {t3}, 1, {l}")
    a(f"v_lshl_add_u32 {vr(V_TR)}, {t3}, 3, {vr(V_TR)}")
    a(f"s_lshl_b32 s{S_T1}, s{S_W}, 1")
    a(f"v_add_u32 {t2}, s{S_T1}, {t2}")
    a(f"v_lshrrev_b32 {vr(V_TRG)}, 1, {t0}")
    a(f"v_lshl_add_u32 {vr(V_TRG)}, {t1}, 1, {vr(V_TRG)}")
    a(f"v_lshlrev_b32 {vr(V_TRG)}, 1, {vr(V_TRG)}")
    a(f"v_xor_b32 {t2}, {t2}, {vr(V_TRG)}")
    a(f"v_lshlrev_b32 {t2}, 4, {t2}")
    a(f"v_lshl_add_u32 {t2}, {t3}, 3, {t2}")
    a(f"v_lshl_add_u32 {t2}, {t1}, 13, {t2}")
    a(f"v_lshrrev_b32 {vr(V_TRG)}, 5, {l}")
    a(f"v_lshl_add_u32 {vr(V_TRG)}, {vr(V_TRG)}, 3, {t0}")
    a(f"v_lshl_add_u32 {vr(V_TRG)}, {vr(V_TRG)}, 7, {t2}")
    a(f"v_lshrrev_b32 {t0}, 3, {l}")
    a(f"s_lshl_b32 s{S_T1}, s{S_W}, 3")
    a(f"v_add_u32 {t0}, s{S_T1}, {t0}")
    a(f"v_mul_u32_u24 {t0}, 3584, {t0}")
    a(f"v_and_b32 {t2}, 7, {l}")
    a(f"v_lshlrev_b32 {t1}, 1, {t1}")
    a(f"v_xor_b32 {t2}, {t2}, {t1}")
    a(f"v_lshl_add_u32 {vr(V_GU0)}, {t2}, 4, {t0}")
    a(f"v_xor_b32 {t2}, 4, {t2}")
    a(f"v_lshl_add_u32 {vr(V_GU1)}, {t2}, 4, {t0}")
    a(f"v_and_b32 {t0}, 31, {l}")
    a(f"v_mul_u32_u24 {t0}, 1040, {t0}")
    a(f"v_lshrrev_b32 {t1}, 5, {l}")
    a(f"v_lshl_add_u32 {vr(V_XF)}, {t1}, 4, {t0}")
    a(f"v_bfe_u32 {t0}, {l}, 3, 1")
    a(f"v_bfe_u32 {t1}, {l}, 4, 1")
    a(f"v_and_b32 {t2}, 0x27, {l}")
    a(f"v_lshl_add_u32 {t2}, {t0}, 4, {t2}")
    a(f"v_lshl_add_u32 {t2}, {t1}, 3, {t2}")
    a(f"v_lshlrev_b32 {vr(V_KP)}, 4, {t2}")
    a(f"v_lshrrev_b32 {t0}, 3, v0")
    a(f"v_mul_u32_u24 {t0}, 1040, {t0}")
    a(f"v_and_b32 {t1}, 7, v0")
    a(f"v_lshl_add_u32 {vr(V_XG)}, {t1}, 4, {t0}")
    a(f"v_cmp_eq_u32 vcc, 0, {l}")
    a(f"v_mov_b32 {t0}, {hex(OOB)}")
    a(f"v_cndmask_b32 {vr(V_FL)}, {t0}, {l}, vcc")


def x_dma_list(s_src, s_dst):
    return [f"s_add_u32 m0, s{s_dst}, {4 * i * 1040}\ns_add_u32 s{S_T2}, s{s_src}, {4 * i * 1024}\n"
            f"buffer_load_dwordx4 {vr(V_L16W)}, {sr(SRD_C,4)}, s{S_T2} offen lds" for i in range(8)]


def x_first(a):
    a(f"s_lshl_b32 s{S_T0}, s{S_SUB}, 15")
    a(f"s_mul_i32 s{S_T1}, s{S_W}, 1040")
    for x in x_dma_list(S_T0, S_T1):
        a(x)


def issue256(a, srdreg, kk, slot):
    for i in range(4):
        a(f"s_add_u32 m0, s{S_W1K}, {slot + i * 4096}")
        a(f"s_add_u32 s{S_T0}, s{S_OFF}, {(64 * kk + 16 * i) * 8192}")
        a(f"buffer_load_dwordx4 {vr(V_DMA)}, {sr(srdreg,4)}, s{S_T0} offen lds")


def consume256(a, base, kk, slot):
    a(f"v_add_u32 {vr(V_T0)}, {slot}, {vr(V_TR)}")
    for tt in range(4):
        for jh in range(2):
            a(f"ds_read_b64_tr_b16 {ar(base + (4 * kk + tt) * 4 + 2 * jh, 2)}, {vr(V_T0)} offset:{tt * 4096 + jh * 1024}")


S_PREV, S_PFL, S_XS, S_XD, S_PQ = 70, 71, 72, 73, 74


def block_offsets(a):
    a(f"s_lshl_b32 s{S_T0}, s{S_H}, 6")
    a(f"s_add_u32 s{S_T0}, s{S_T0}, s{S_SEG}")
    a(f"s_lshl_b32 s{S_PREV}, s{S_T0}, 15")
    a(f"s_lshl_b32 s{S_PQ}, s{S_T0}, 13")
    a(f"s_add_u32 s{S_PQ}, s{S_PQ}, {hex(QX)}")
    a(f"s_lshl_b32 s{S_T0}, s{S_H}, 10")
    a(f"s_lshl_b32 s{S_T1}, s{S_W}, 8")
    a(f"s_add_u32 s{S_T0}, s{S_T0}, s{S_T1}")
    a(f"s_lshl_b32 s{S_T1}, s{S_SEG}, 2")
    a(f"s_add_u32 s{S_T0}, s{S_T0}, s{S_T1}")
    a(f"s_add_u32 s{S_PFL}, s{S_T0}, {hex(FKV)}")


def seg_loop(a, name, second_is_v, fill, finish, younger, two_variants=False):
    a(f"s_mov_b32 s{S_I}, 0")
    a(f"s_mov_b32 s{S_SEG}, s{S_SUB}")
    a(f"s_mov_b32 s{S_XCUR}, {XB}")
    for r in (S_PREV, S_PQ, S_PFL):
        a(f"s_mov_b32 s{r}, {hex(OOB)}")
    a(f"{name}:")
    a(f"s_add_u32 s{S_XS}, s{S_SEG}, 7")
    a(f"s_min_u32 s{S_XS}, s{S_XS}, 63")
    a(f"s_lshl_b32 s{S_XS}, s{S_XS}, 15")
    a(f"s_sub_u32 s{S_XN}, {XSTR}, s{S_XCUR}")
    a(f"s_mul_i32 s{S_XD}, s{S_W}, 1040")
    a(f"s_add_u32 s{S_XD}, s{S_XD}, s{S_XN}")
    a(f"v_add_u32 {vr(V_XC)}, s{S_XCUR}, {vr(V_XF)}")
    a(f"s_waitcnt vmcnt({younger})")
    a("s_barrier")
    rd = [f"ds_read_b128 {vr(XF + 4 * (t % 4), 4)}, {vr(V_XC)} offset:{t * 32}" for t in range(32)]

    def body(with_second):
        for t in range(3):
            a(rd[t])
        f = fill()
        for k, x in enumerate(x_dma_list(S_XS, S_XD)):
            f.setdefault(2 * k + 1, []).insert(0, x)
        for t in range(32):
            if t + 3 < 32:
                a(rd[t + 3])
            a(f"WAITL {rd[t]}")
            x = vr(XF + 4 * (t % 4), 4)
            c0 = "0" if t == 0 else vr(T0, 16)
            c1 = "0" if t == 0 else vr(T1, 16)
            a(f"v_mfma_f32_32x32x16_bf16 {vr(T0,16)}, {ar(4 * t, 4)}, {x}, {c0}")
            for y in f.pop(2 * t, []):
                a(y)
            if with_second:
                if second_is_v:
                    a(f"v_mfma_f32_32x32x16_bf16 {vr(T1,16)}, {x}, {ar(128 + 4 * t, 4)}, {c1}")
                else:
                    a(f"v_mfma_f32_32x32x16_bf16 {vr(T1,16)}, {ar(128 + 4 * t, 4)}, {x}, {c1}")
            for y in f.pop(2 * t + 1, []):
                a(y)
        assert not f, f

    if two_variants:
        a(f"s_cmp_eq_u32 s{S_FFN}, 0")
        a(f"s_cbranch_scc1 {name}_noffn")
        body(True)
        a(f"s_branch {name}_join")
        a(f"{name}_noffn:")
        body(False)
        a(f"{name}_join:")
    else:
        body(True)
    block_offsets(a)
    a(f"s_mov_b32 s{S_XCUR}, s{S_XN}")
    a(f"s_add_u32 s{S_SEG}, s{S_SEG}, 7")
    a(f"s_add_u32 s{S_I}, s{S_I}, 1")
    finish()
    a(f"s_cmp_lt_u32 s{S_I}, s{S_NSEG}")
    a(f"s_cbranch_scc1 {name}")


def pack(a, acc, dst):
    for j in range(8):
        a(f"v_cvt_pk_bf16_f32 {vr(dst + j)}, {vr(acc + 2 * j)}, {vr(acc + 2 * j + 1)}")


def place(f, start, items, per):
    for k, x in enumerate(items):
        f.setdefault(start + k // per, []).append(x)


def phase1a(a, meanwhile, extra, P):
    srd(a, SRD_A, P_WK, 512 * 8192)
    srd(a, SRD_B, P_WV, 512 * 8192)
    a(f"s_lshl_b32 s{S_OFF}, s{S_H}, 8")

    def after(c):
        if c == 6:
            arrive(a, V_T1)
            srd(a, SRD_C, P_X, 2048 * 1024)

    stage(a, 16, 7,
          lambda c: issue256(a, SRD_A if c < 8 else SRD_B, c % 8, XSTR + (c % 7) * 16384),
          lambda c: consume256(a, 0 if c < 8 else 128, c % 8, XSTR + (c % 7) * 16384), after, meanwhile, extra)

    mark(a, 1, V_T0, dbg_base=6)

    ws = sr(SRD_WS, 4)
    a(f"v_mov_b64 {vr(SENT,2)}, -1")
    a(f"v_mov_b64 {vr(SENT + 2, 2)}, -1")
    a(f"s_lshr_b32 s{S_T0}, s{S_W1K}, 1")
    a(f"v_add_u32 {vr(V_T0)}, s{S_T0}, {vr(V_L16)}")
    a(f"v_mov_b32 {vr(V_T1)}, {hex(OOB)}")
    a(f"v_cmp_gt_u32 vcc, 32, {vr(V_LANE)}")
    a(f"v_cndmask_b32 {vr(V_KM)}, {vr(V_T1)}, {vr(V_T0)}, vcc")
    a(f"s_lshl_b32 s{S_T0}, s{S_W}, 12")
    a(f"v_add_u32 {vr(V_VM)}, s{S_T0}, {vr(V_L16)}")
    a(f"v_add_u32 {vr(V_RD)}, s{S_T0}, {vr(V_KP)}")
    a(f"v_mov_b32 {vr(V_G)}, 1")
    st = [f"buffer_store_dwordx4 {vr(PK + 4 * bb, 4)}, {vr(V_RD)}, {ws}, s{S_PREV} offen offset:{KX + bb * 1024} sc1" for bb in range(2)]
    st += [f"buffer_store_dwordx4 {vr(PK + 8 + 4 * bb, 4)}, {vr(V_VM)}, {ws}, s{S_PREV} offen offset:{VX + bb * 1024} sc1" for bb in range(2)]
    st += [f"s_add_u32 s{S_T3}, s{S_PREV}, {hex(KM)}\nbuffer_store_dwordx4 {vr(SENT,4)}, {vr(V_KM)}, {ws}, s{S_T3} offen sc1",
           f"buffer_store_dwordx4 {vr(SENT,4)}, {vr(V_L16W)}, {ws}, s{S_T3} offen offset:2048 sc1"]
    flag = f"s_waitcnt vmcnt(0)\nbuffer_store_dword {vr(V_G)}, {vr(V_FL)}, {ws}, s{S_PFL} offen sc1"

    def fill():
        f = {17 + 2 * k: [x] for k, x in enumerate(st)}
        f[62] = [flag]
        return f

    def finish():
        pack(a, T0, PK)
        pack(a, T1, PK + 8)
        if P["prompt"]:
            a(f"s_cmp_gt_u32 s{S_I}, {P['prompt']}")
            a("s_cbranch_scc1 L_f1a_lazy")
            for x in st + [flag]:
                a(x)
            a(f"s_mov_b32 s{S_PREV}, {hex(OOB)}")
            a(f"s_mov_b32 s{S_PFL}, {hex(OOB)}")
            a("L_f1a_lazy:")

    seg_loop(a, "L_f1a", True, fill, finish, 1)
    for x in st + [flag]:
        a(x)


def phase1b(a, P):
    NS = P['f_slots']
    a("s_waitcnt vmcnt(0)")
    a("s_barrier")
    x_first(a)
    srd(a, SRD_A, P_GW, 1024)
    a(f"v_and_b32 {vr(V_T0)}, 7, v0")
    a(f"v_lshlrev_b32 {vr(V_T0)}, 4, {vr(V_T0)}")
    for i in range(8):
        a(f"buffer_load_dwordx4 {vr(GW + 4 * i, 4)}, {vr(V_T0)}, {sr(SRD_A,4)}, 0 offen offset:{i * 128}")
    srd(a, SRD_A, P_WQ, 512 * 8192)
    stage(a, 8, NS, lambda c: issue256(a, SRD_A, c, STG + (c % NS) * 16384),
          lambda c: consume256(a, 0, c, STG + (c % NS) * 16384))
    a(f"s_cmp_eq_u32 s{S_FFN}, 0")
    a("s_cbranch_scc1 L_f1b_skipw")
    srd(a, SRD_A, P_WG, 512 * 3584)
    srd(a, SRD_B, P_WU, 512 * 3584)
    a(f"s_lshl_b32 s{S_OFF}, s{S_H}, 7")
    a("s_barrier")

    def issue_gu(c):
        slot = STG + (c % NS) * 16384
        for i in range(4):
            m = i >> 1
            a(f"s_add_u32 m0, s{S_W1K}, {slot + m * 8192 + (i & 1) * 4096}")
            a(f"s_add_u32 s{S_T0}, s{S_OFF}, {(64 * c + 32 * (i & 1)) * 3584}")
            a(f"buffer_load_dwordx4 {vr(V_GU0 + m)}, {sr(SRD_A if m == 0 else SRD_B,4)}, s{S_T0} offen lds")

    def consume_gu(c):
        a(f"v_add_u32 {vr(V_T0)}, {STG + (c % NS) * 16384}, {vr(V_TRG)}")
        for tt in range(4):
            for jh in range(2):
                a(f"ds_read_b64_tr_b16 {ar(128 + (4 * c + tt) * 4 + 2 * jh, 2)}, {vr(V_T0)} offset:{tt * 2048 + jh * 512}")

    stage(a, 8, NS, issue_gu, consume_gu)
    a("L_f1b_skipw:")
    mark(a, 3, V_T0, dbg_base=6)

    ws = sr(SRD_WS, 4)
    GX, GT, UP, E = 128, 160, 168, 176
    c0 = -2.0 * (2.0 / math.pi) ** 0.5 * LOG2E
    D = "row_mask:0xf bank_mask:0xf"
    t = vr(V_T1)
    gate = [f"v_dot2_f32_bf16 {vr(V_T1 + (i & 1))}, {vr(GX + i)}, {vr(GW + i)}, {vr(V_T1 + (i & 1)) if i > 1 else 0}" for i in range(32)]
    gate2 = [f"v_add_f32 {t}, {t}, {vr(V_T2)}", f"v_add_f32_dpp {t}, {t}, {t} quad_perm:[1,0,3,2] {D}",
             f"v_add_f32_dpp {t}, {t}, {t} quad_perm:[2,3,0,1] {D}", f"v_add_f32_dpp {t}, {t}, {t} row_half_mirror {D}",
             f"v_mul_f32 {t}, {f32(-LOG2E)}, {t}", f"v_exp_f32 {t}, {t}", f"v_add_f32 {t}, 1.0, {t}", f"v_rcp_f32 {t}, {t}",
             f"ds_write_b32 {vr(V_OUT)}, {t}"]
    gelu = []
    for j in range(8):
        x, e = vr(GT + j), vr(E + j)
        gelu += [f"v_mul_f32 {e}, {x}, {x}", f"v_fmaak_f32 {e}, {vr(V_KM)}, {e}, {f32(c0)}", f"v_mul_f32 {e}, {e}, {x}", f"v_exp_f32 {e}, {e}"]
    gelu += [f"v_sub_f32 {vr(V_G)}, 1.0, {vr(V_G)}"]
    for j in range(8):
        e, u = vr(E + j), vr(UP + j)
        gelu += [f"v_add_f32 {e}, 1.0, {e}", f"v_mul_f32 {u}, {u}, {vr(V_G)}", f"v_rcp_f32 {e}, {e}"]
    gelu += [f"v_mul_f32 {vr(E + j)}, {vr(E + j)}, {vr(UP + j)}" for j in range(8)]
    gelu += [f"v_cvt_pk_bf16_f32 {vr(PK + 8 + j)}, {vr(E + 2 * j)}, {vr(E + 2 * j + 1)}" for j in range(4)]
    gread = f"ds_read_b32 {vr(V_G)}, {vr(V_GC)}"
    qst = [f"buffer_store_dwordx4 {vr(PK + 4 * bb, 4)}, {vr(V_RD)}, {ws}, s{S_PQ} offen offset:{bb * 1024}" for bb in range(2)]
    hst = f"s_add_u32 s{S_T3}, s{S_PREV}, {hex(HX)}\nbuffer_store_dwordx4 {vr(PK + 8, 4)}, {vr(V_L16W)}, {ws}, s{S_T3} offen"

    def fill():
        f = {0: [gread, f"v_add_u32 {vr(V_T0)}, s{S_XCUR}, {vr(V_XG)}"]}
        xr = [f"ds_read_b128 {vr(GX + 4 * i, 4)}, {vr(V_T0)} offset:{i * 128}" for i in range(8)]
        place(f, 2, xr, 1)
        place(f, 4, gelu[:32], 3)
        place(f, 15, [f"WAITL {gread}"] + gelu[32:], 4)
        place(f, 17, qst, 1)
        place(f, 30, [hst], 1)
        place(f, 32, [f"WAITL {xr[7]}"] + gate, 2)
        place(f, 50, gate2, 1)
        return f

    def finish():
        for j in range(8):
            a(f"v_mul_f32 {vr(UP + j)}, {vr(T1 + j)}, {vr(T1 + 8 + j)}")
            a(f"v_mov_b32 {vr(GT + j)}, {vr(T1 + j)}")
        pack(a, T0, PK)
        a(f"v_add_u32 {vr(V_GC)}, 128, {vr(V_GC)}")
        a(f"v_add_u32 {vr(V_OUT)}, 128, {vr(V_OUT)}")
        a("s_waitcnt lgkmcnt(0)")

    a(f"v_mov_b32 {vr(V_KM)}, {f32(c0 * 0.044715)}")
    for j in range(8):
        a(f"v_mov_b64 {vr(T1 + 2 * j, 2)}, 0")
        a(f"v_mov_b64 {vr(GT + 2 * j, 2)}, 0")
    a(f"s_lshl_b32 s{S_T0}, s{S_W}, 11")
    a(f"v_add_u32 {vr(V_RD)}, s{S_T0}, {vr(V_L16)}")
    a(f"v_lshrrev_b32 {vr(V_OUT)}, 3, v0")
    a(f"v_lshlrev_b32 {vr(V_OUT)}, 2, {vr(V_OUT)}")
    a(f"v_add_u32 {vr(V_OUT)}, {GB}, {vr(V_OUT)}")
    a(f"v_and_b32 {vr(V_GC)}, 31, {vr(V_LANE)}")
    a(f"v_lshlrev_b32 {vr(V_GC)}, 2, {vr(V_GC)}")
    a(f"v_add_u32 {vr(V_GC)}, {GB - 128}, {vr(V_GC)}")
    seg_loop(a, "L_f1b", False, fill, finish, 3, two_variants=True)
    a("s_barrier")
    for x in [gread] + qst + gelu[:32] + ["s_waitcnt lgkmcnt(0)"] + gelu[32:] + [hst]:
        a(x)
    a("s_waitcnt vmcnt(0)")
    a("s_barrier")


ACC, QF, HF, SX, SM, OA, PF, SEL, VMF = 64, 128, 160, 176, 192, 208, 240, 252, 24
RDB = [40, 44, 48, 52, 56, 60, SM, SM + 4]
A_V, A_K = 192, 224


def part_base(a, s_seg):
    a(f"s_lshl_b32 s{S_T0}, s{s_seg}, 20")
    a(f"s_lshl_b32 s{S_T1}, s{S_W}, 18")
    a(f"s_add_u32 s{S_T0}, s{S_T0}, s{S_T1}")
    a(f"s_lshl_b32 s{S_T1}, s{S_H}, 10")
    a(f"s_add_u32 s{S_T0}, s{S_T0}, s{S_T1}")
    a(f"s_add_u32 s{S_T0}, s{S_T0}, {hex(PART)}")


def phase3(a, P):
    NS = P['f_slots']
    l = vr(V_LANE)
    t0, t1, t2, t3 = (vr(x) for x in (V_T0, V_T1, V_T2, V_T3))
    CH = 17408
    base = 0x10C00
    srd(a, SRD_A, P_WO, 4096 * 1024)
    srd(a, SRD_B, P_WD, 1792 * 1024)
    a(f"v_lshrrev_b32 {t0}, 5, {l}")
    a(f"v_bfe_u32 {t1}, {l}, 2, 2")
    a(f"v_lshl_add_u32 {t0}, {t0}, 2, {t1}")
    a(f"v_mul_u32_u24 {t0}, 1088, {t0}")
    a(f"v_bfe_u32 {t1}, {l}, 4, 1")
    a(f"v_lshl_add_u32 {t0}, {t1}, 5, {t0}")
    a(f"v_and_b32 {t1}, 3, {l}")
    a(f"v_lshl_add_u32 {t0}, {t1}, 3, {t0}")
    a(f"s_lshl_b32 s{S_T0}, s{S_W}, 8")
    a(f"v_add_u32 {vr(V_TR)}, s{S_T0}, {t0}")
    a(f"s_mul_i32 s{S_XN}, s{S_W}, 1088")

    def mk(srdreg, abase, nk):
        def issue(c):
            for i in range(4):
                a(f"s_add_u32 m0, s{S_XN}, {base + (c % NS) * CH + 4 * i * 1088}")
                a(f"s_add_u32 s{S_T0}, s{S_OFF}, {(16 * c + 4 * i) * 1024}")
                a(f"buffer_load_dwordx4 {vr(V_L16W)}, {sr(srdreg,4)}, s{S_T0} offen lds")

        def consume(c):
            a(f"v_add_u32 {t0}, {base + (c % NS) * CH}, {vr(V_TR)}")
            for t in range(4):
                for jh in range(2):
                    a(f"ds_read_b64_tr_b16 {ar(abase + (t * nk + c) * 4 + 2 * jh, 2)}, {t0} offset:{jh * 8 * 1088 + 64 * t}")
        return issue, consume

    a(f"s_lshl_b32 s{S_OFF}, s{S_H}, 17")
    stage(a, 8, NS, *mk(SRD_A, 0, 8))
    a(f"s_cmp_eq_u32 s{S_FFN}, 0")
    a("s_cbranch_scc1 L_f3_skipw")
    a("s_barrier")
    a(f"s_lshl_b32 s{S_OFF}, s{S_H}, 16")
    stage(a, 4, NS, *mk(SRD_B, 128, 4))
    a("L_f3_skipw:")

    a(f"v_lshrrev_b32 {t0}, 5, {l}")
    a(f"v_and_b32 {t1}, 7, {l}")
    a(f"v_lshlrev_b32 {t1}, 4, {t1}")
    a(f"v_lshl_add_u32 {vr(V_KM)}, {t0}, 7, {t1}")
    a(f"v_and_b32 {t1}, 15, {l}")
    a(f"v_lshlrev_b32 {t1}, 4, {t1}")
    a(f"v_lshl_add_u32 {t2}, {t0}, 9, {t1}")
    a(f"v_bfe_u32 {t3}, {l}, 4, 1")
    a(f"v_lshl_add_u32 {vr(V_VM)}, {t3}, 3, {t2}")
    a(f"v_lshrrev_b32 {t2}, 4, {l}")
    a(f"v_lshl_add_u32 {t1}, {t2}, 10, {t1}")
    a(f"s_lshl_b32 s{S_T0}, s{S_W}, 8")
    a(f"v_add_u32 {vr(V_RD)}, s{S_T0}, {t1}")
    a(f"s_and_b32 s{S_T0}, s{S_W}, 1")
    a(f"s_lshl_b32 s{S_T0}, s{S_T0}, 14")
    a(f"s_lshr_b32 s{S_T1}, s{S_W}, 1")
    a(f"s_lshl_b32 s{S_T1}, s{S_T1}, 3")
    a(f"s_add_u32 s{S_T0}, s{S_T0}, s{S_T1}")
    a(f"s_lshl_b32 s{S_T1}, s{S_H}, 5")
    a(f"s_add_u32 s{S_T0}, s{S_T0}, s{S_T1}")
    a(f"v_and_b32 {t1}, 15, {l}")
    a(f"v_lshlrev_b32 {t1}, 10, {t1}")
    a(f"v_lshl_add_u32 {t1}, {t2}, 4, {t1}")
    a(f"v_add_u32 {t1}, s{S_T0}, {t1}")
    a(f"v_cmp_gt_u32 vcc, 2, {t2}")
    a(f"v_mov_b32 {t3}, {hex(OOB)}")
    a(f"v_cndmask_b32 {vr(V_OUT)}, {t3}, {t1}, vcc")
    a(f"v_and_b32 {t1}, 15, {l}")
    a(f"v_and_b32 {t2}, 1, {l}")
    a(f"v_lshlrev_b32 {t2}, 4, {t2}")
    a(f"v_mov_b32 {t3}, 0x3f80")
    a(f"v_lshlrev_b32 {t3}, {t2}, {t3}")
    a(f"v_lshrrev_b32 {t1}, 1, {t1}")
    for r in range(4):
        a(f"v_cmp_eq_u32 vcc, {r}, {t1}")
        a(f"v_cndmask_b32 {vr(SEL + r)}, 0, {t3}, vcc")
    a(f"v_and_b32 {t1}, 31, {l}")
    a(f"v_lshlrev_b32 {t0}, 2, {t0}")
    a(f"v_sub_u32 {t1}, {t1}, {t0}")
    for i in range(16):
        a(f"v_cmp_le_i32 {sr(S_MASK + 2 * i, 2)}, {8 * (i >> 2) + (i & 3)}, {t1}")
    srd(a, SRD_A, P_OUT, 2048 * 1024)
    a(f"s_sub_u32 s{S_T2}, s{S_SEG}, 7")
    part_base(a, S_T2)
    for k in range(8):
        a(f"s_add_u32 s{S_T1}, s{S_T0}, {k * 32768}")
        a(f"buffer_store_dwordx4 {vr(SENT,4)}, {vr(V_L16)}, {sr(SRD_WS,4)}, s{S_T1} offen sc1")
    wait_all_arrived(a, V_T0)
    mark(a, 5, V_T0, dbg_base=6)

    ws = sr(SRD_WS, 4)
    GS, NOFF, NQ = 33, 31, 35

    def offsets(s_seg):
        a(f"s_lshl_b32 s{NOFF}, s{S_H}, 6")
        a(f"s_add_u32 s{NOFF}, s{NOFF}, s{s_seg}")
        a(f"s_lshl_b32 s{NQ}, s{NOFF}, 13")
        a(f"s_lshl_b32 s{NOFF}, s{NOFF}, 15")

    def ld(dst, addr, base, off, flag="", op="buffer_load_dwordx4"):
        return f"s_add_u32 s{S_T3}, s{base}, {hex(off & ~0xfff)}\n{op} {dst}, {vr(addr)}, {ws}, s{S_T3} offen offset:{off & 0xfff} {flag}"
    ld_h = [ld(vr(HF + 4 * k, 4), V_L16, NOFF, HX + k * 1024) for k in range(4)]
    ld_k = [ld(ar(A_K + 4 * k, 4), V_KP, NOFF, KX + (k >> 1) * 4096 + (k & 1) * 1024) for k in range(8)]
    ld_v = [ld(ar(A_V + 4 * k, 4), V_L16, NOFF, VX + (k >> 1) * 4096 + (k & 1) * 1024) for k in range(8)]
    ld_q = [ld(vr(QF + 4 * k, 4), V_L16, NQ, QX + k * 1024) for k in range(8)]
    ld_m = lambda base: ([ld(vr(OA + 4 * k, 4), V_KM, base, KM + k * 256, "sc1") for k in range(8)] +
                         [ld(vr(VMF + 4 * et + hf), V_VM, base, KM + 2048 + et * 1024 + hf * 256, "sc1", "buffer_load_dword")
                          for et in range(4) for hf in range(2)])

    def umax(first, b, n):
        if first:
            a(f"v_max_u32 {t0}, {vr(b)}, {vr(b + 1)}")
        else:
            a(f"v_max3_u32 {t0}, {t0}, {vr(b)}, {vr(b + 1)}")
        if n == 4:
            a(f"v_max3_u32 {t0}, {t0}, {vr(b + 2)}, {vr(b + 3)}")

    def gather(tag, s_seg, flagged):
        if flagged:
            a(f"s_lshl_b32 s{S_T1}, s{s_seg}, 9")
            a(f"s_lshr_b32 s{S_T2}, s{S_H}, 3")
            a(f"s_lshl_b32 s{S_T2}, s{S_T2}, 7")
            a(f"s_add_u32 s{S_T1}, s{S_T1}, s{S_T2}")
            a(f"s_add_u32 s{S_T1}, s{S_T1}, {hex(FP)}")
            a(f"v_and_b32 {t1}, 31, {l}")
            a(f"v_lshlrev_b32 {t1}, 2, {t1}")
            a(f"{tag}_fp:")
            a(f"buffer_load_dword {t0}, {t1}, {ws}, s{S_T1} offen sc1")
            a("s_waitcnt vmcnt(0)")
            a(f"v_cmp_ne_u32 vcc, 1, {t0}")
            a(f"s_cbranch_vccz {tag}_fp_ok")
            a("s_sleep 1")
            timeout(a, f"{tag}_fp")
            a(f"{tag}_fp_ok:")
        a(f"s_lshl_b32 s{S_T0}, s{s_seg}, 20")
        a(f"s_lshl_b32 s{S_T1}, s{S_H}, 15")
        a(f"s_add_u32 s{S_T0}, s{S_T0}, s{S_T1}")
        a(f"s_add_u32 s{S_T0}, s{S_T0}, {hex(PART)}")
        a(f"{tag}_rd:")
        for i in range(8):
            a(f"s_add_u32 s{S_T1}, s{S_T0}, {i * 4096}")
            a(f"buffer_load_dwordx4 {vr(RDB[i], 4)}, {vr(V_RD)}, {ws}, s{S_T1} offen sc1")
        R = SM + 8
        for i in range(8):
            a(f"s_waitcnt vmcnt({7 - i})")
            a(f"v_mfma_f32_16x16x32_bf16 {vr(R,4)}, {vr(SEL,4)}, {vr(RDB[i], 4)}, {'0' if i == 0 else vr(R, 4)}")
            if not flagged:
                umax(i == 0, RDB[i], 4)
        if not flagged:
            a(f"v_cmp_eq_u32 vcc, -1, {t0}")
            a(f"s_cbranch_vccz {tag}_rd_ok")
            timeout(a, f"{tag}_rd")
            a(f"{tag}_rd_ok:")
        a(f"s_lshl_b32 s{S_T0}, s{s_seg}, 15")
        a(f"v_cvt_pk_bf16_f32 {vr(R)}, {vr(R)}, {vr(R + 1)}")
        a(f"v_cvt_pk_bf16_f32 {vr(R + 1)}, {vr(R + 2)}, {vr(R + 3)}")
        a(f"buffer_store_dwordx2 {vr(R,2)}, {vr(V_OUT)}, {sr(SRD_A,4)}, s{S_T0} offen")

    def mem_scores(waits):
        for k in range(8):
            if waits:
                a(f"s_waitcnt vmcnt({15 - k})")
            a(f"v_mfma_f32_32x32x16_bf16 {vr(SM,16)}, {vr(OA + 4 * k, 4)}, {vr(QF + 4 * k, 4)}, {'0' if k == 0 else vr(SM, 16)}")
            umax(k == 0, OA + 4 * k, 4)
        if waits:
            a("s_waitcnt vmcnt(0)")
        for et in range(4):
            umax(False, VMF + 4 * et, 2)
        a(f"v_cmp_eq_u32 vcc, -1, {t0}")

    for j in range(4):
        a(f"v_mov_b64 {vr(VMF + 4 * j + 2, 2)}, 0")
    a(f"s_mov_b32 s{S_I}, 0")
    a(f"s_mov_b32 s{S_SEG}, s{S_SUB}")
    offsets(S_SEG)
    for x in ld_h + ld_k + ld_v + ld_m(NOFF) + ld_q:
        a(x)
    a("L_f3:")
    a(f"s_mov_b32 s{S_OFF}, s{NOFF}")
    a(f"s_lshl_b32 s{S_T0}, s{S_I}, 7")
    a(f"v_and_b32 {t0}, 31, {l}")
    a(f"v_lshl_add_u32 {t0}, {t0}, 2, s{S_T0}")
    a(f"v_add_u32 {t0}, {GB}, {t0}")
    a(f"ds_read_b32 {vr(V_G)}, {t0}")
    a(f"s_cmp_eq_u32 s{S_FFN}, 0")
    a("s_cbranch_scc1 L_f3_zero")
    a("s_waitcnt vmcnt(9)")
    for k in range(4):
        for t in range(4):
            c = "0" if k == 0 else vr(ACC + 16 * t, 16)
            a(f"v_mfma_f32_32x32x16_bf16 {vr(ACC + 16 * t, 16)}, {ar(128 + (t * 4 + k) * 4, 4)}, {vr(HF + 4 * k, 4)}, {c}")
    a("s_branch L_f3_ffn_done")
    a("L_f3_zero:")
    for j in range(32):
        a(f"v_mov_b64 {vr(ACC + 2 * j, 2)}, 0")
    a("L_f3_ffn_done:")
    a("s_waitcnt vmcnt(0) lgkmcnt(0)")
    for k in range(8):
        c = "0" if k == 0 else vr(SX, 16)
        a(f"v_mfma_f32_32x32x16_bf16 {vr(SX,16)}, {ar(A_K + 4 * k, 4)}, {vr(QF + 4 * k, 4)}, {c}")
    a(f"v_mov_b32 {t3}, 0xff800000")
    for i in range(16):
        a(f"v_cndmask_b32 {vr(SX + i)}, {t3}, {vr(SX + i)}, {sr(S_MASK + 2 * i, 2)}")
    a(f"v_max3_f32 {t2}, {vr(SX)}, {vr(SX + 1)}, {vr(SX + 2)}")
    for i in range(3, 15, 2):
        a(f"v_max3_f32 {t2}, {t2}, {vr(SX + i)}, {vr(SX + i + 1)}")
    a(f"v_max_f32 {t2}, {t2}, {vr(SX + 15)}")
    a(f"s_cmp_eq_u32 s{S_I}, 0")
    a("s_cbranch_scc1 L_f3_nog")
    a(f"s_sub_u32 s{S_T3}, s{S_SEG}, 7")
    gather("L_f3g", S_T3, True)
    a("L_f3_nog:")
    mark(a, 30, V_T0, per=S_I)
    if P["spec_km"]:
        mem_scores(False)
        a("s_cbranch_vccz L_f3_km_ok")
    a(f"s_movk_i32 s{S_T1}, {hex(KM + 2048)}")
    a(f"s_cmp_eq_u32 s{S_SEG}, 63")
    a(f"s_cselect_b32 s{S_T1}, {hex(KM - 0x8000 + (1 << 32))}, s{S_T1}")
    a(f"s_add_u32 s{S_T1}, s{S_T1}, s{S_OFF}")
    a("L_f3_far:")
    if P["far_op"] == "atomic":
        a(f"v_mov_b32 {t0}, 0")
        a("s_mov_b64 exec, 1")
        a(f"buffer_atomic_or {t0}, off, {ws}, s{S_T1} sc0")
        a("s_mov_b64 exec, -1")
    else:
        a(f"buffer_load_dword {t0}, off, {ws}, s{S_T1} {P['far_op']}")
    a("s_waitcnt vmcnt(0)")
    a(f"v_readfirstlane_b32 s{S_T0}, {t0}")
    a(f"s_cmp_lg_u32 s{S_T0}, -1")
    a("s_cbranch_scc1 L_f3_near")
    a(f"s_sleep {P['far_sleep']}")
    timeout(a, "L_f3_far")
    a("L_f3_near:")
    if P["near_sleep"]:
        a(f"s_sleep {P['near_sleep']}")
    a("L_f3_km:")
    for x in ld_m(S_OFF):
        a(x)
    mem_scores(True)
    a("s_cbranch_vccz L_f3_km_ok")
    timeout(a, "L_f3_km")
    a("L_f3_km_ok:")
    mark(a, 31, V_T0, per=S_I)
    a(f"s_mov_b32 s{S_T0}, {C_EXP}")
    a(f"v_max3_f32 {t2}, {t2}, {vr(SM)}, {vr(SM + 1)}")
    a(f"v_max3_f32 {t2}, {t2}, {vr(SM + 2)}, {vr(SM + 3)}")
    a(f"v_mov_b32 {t1}, {t2}")
    a(f"v_permlane32_swap_b32 {t1}, {t2}")
    a(f"v_max_f32 {t2}, {t1}, {t2}")
    a(f"v_mul_f32 {t2}, s{S_T0}, {t2}")
    vals = [SX + i for i in range(16)] + [SM + i for i in range(4)]
    for r in vals:
        a(f"v_fma_f32 {vr(r)}, {vr(r)}, s{S_T0}, -{t2}")
        a(f"v_exp_f32 {vr(r)}, {vr(r)}")
    a(f"v_add_f32 {t0}, {vr(vals[0])}, {vr(vals[1])}")
    a(f"v_add_f32 {t1}, {vr(vals[2])}, {vr(vals[3])}")
    for i in range(4, 20, 2):
        a(f"v_add_f32 {t0}, {t0}, {vr(vals[i])}")
        a(f"v_add_f32 {t1}, {t1}, {vr(vals[i + 1])}")
    a(f"v_add_f32 {t0}, {t0}, {t1}")
    a(f"v_mov_b32 {t1}, {t0}")
    a(f"v_permlane32_swap_b32 {t1}, {t0}")
    a(f"v_add_f32 {t0}, {t1}, {t0}")
    a(f"v_rcp_f32 {t0}, {t0}")
    a(f"v_mul_f32 {t0}, {t0}, {vr(V_G)}")
    for r in vals:
        a(f"v_mul_f32 {vr(r)}, {vr(r)}, {t0}")
    for j in range(8):
        a(f"v_cvt_pk_bf16_f32 {vr(PF + j)}, {vr(SX + 2 * j)}, {vr(SX + 2 * j + 1)}")
    for j in range(2):
        a(f"v_cvt_pk_bf16_f32 {vr(PF + 8 + j)}, {vr(SM + 2 * j)}, {vr(SM + 2 * j + 1)}")
    a(f"v_mov_b64 {vr(PF + 10, 2)}, 0")

    def pv(et):
        o = vr(OA + 16 * (et & 1), 16)
        a(f"v_mfma_f32_32x32x16_bf16 {o}, {ar(A_V + 8 * et, 4)}, {vr(PF, 4)}, 0")
        a(f"v_mfma_f32_32x32x16_bf16 {o}, {ar(A_V + 8 * et + 4, 4)}, {vr(PF + 4, 4)}, {o}")
        a(f"v_mfma_f32_32x32x16_bf16 {o}, {vr(VMF + 4 * et, 4)}, {vr(PF + 8, 4)}, {o}")

    def cv(et):
        o = OA + 16 * (et & 1)
        for j in range(8):
            a(f"v_cvt_pk_bf16_f32 {vr(QF + 8 * et + j)}, {vr(o + 2 * j)}, {vr(o + 2 * j + 1)}")

    pv(0); pv(1); cv(0); pv(2); cv(1); pv(3); cv(2)
    part_base(a, S_SEG)
    a(f"s_add_u32 s{S_T2}, s{S_SEG}, 7")
    offsets(S_T2)

    def project(pre):
        pre = list(pre)

        def wo_t(t, ks, n=0):
            for k in ks:
                a(f"v_mfma_f32_32x32x16_bf16 {vr(ACC + 16 * t, 16)}, {ar((t * 8 + k) * 4, 4)}, {vr(QF + 4 * k, 4)}, {vr(ACC + 16 * t, 16)}")
                for _ in range(n):
                    if pre:
                        a(pre.pop(0))

        def out_t(t, bb):
            p = SX + 4 * (2 * t + bb)
            for j in range(4):
                a(f"v_cvt_pk_bf16_f32 {vr(p + j)}, {vr(ACC + 16 * t + 8 * bb + 2 * j)}, {vr(ACC + 16 * t + 8 * bb + 2 * j + 1)}")
            a(f"s_add_u32 s{S_T1}, s{S_T0}, {(2 * t + bb) * 32768}")
            a(f"buffer_store_dwordx4 {vr(p,4)}, {vr(V_L16)}, {ws}, s{S_T1} offen sc1")
        wo_t(0, range(3)); cv(3); wo_t(0, range(3, 8), 1)
        for t in range(1, 4):
            wo_t(t, range(4), 2); out_t(t - 1, 0); wo_t(t, range(4, 6), 1); out_t(t - 1, 1); wo_t(t, range(6, 8), 1)
        assert not pre
        out_t(3, 0); out_t(3, 1)

    a(f"s_add_u32 s{S_T1}, s{S_I}, 1")
    a(f"s_cmp_eq_u32 s{S_T1}, s{S_NSEG}")
    a("s_cbranch_scc1 L_f3_last")
    project(ld_h + ld_k + ld_v + (ld_m(NOFF) if P["spec_km"] else []))
    for x in ld_q:
        a(x)
    a(f"s_lshl_b32 s{S_T1}, s{S_SEG}, 9")
    a(f"s_lshl_b32 s{S_T2}, s{S_W}, 7")
    a(f"s_add_u32 s{S_T1}, s{S_T1}, s{S_T2}")
    a(f"s_lshl_b32 s{S_T2}, s{S_H}, 2")
    a(f"s_add_u32 s{S_T1}, s{S_T1}, s{S_T2}")
    a(f"s_add_u32 s{S_T1}, s{S_T1}, {hex(FP)}")
    a(f"v_mov_b32 {t0}, 1")
    a("s_waitcnt vmcnt(8)")
    a(f"buffer_store_dword {t0}, {vr(V_FL)}, {ws}, s{S_T1} offen sc1")
    mark(a, 32, V_T0, per=S_I)
    a(f"s_add_u32 s{S_SEG}, s{S_SEG}, 7")
    a(f"s_add_u32 s{S_I}, s{S_I}, 1")
    a("s_branch L_f3")
    a("L_f3_last:")
    project([])
    if P["last_wait"] is not None:
        a(f"s_waitcnt vmcnt({P['last_wait']})")
    gather("L_f3l", S_SEG, False)
    mark(a, 32, V_T0, per=S_I)


def follower(a, P):
    a("L_follower:")
    if P.get("f_none"):
        a(f"s_mov_b32 s{S_T0}, 0")
        a("s_barrier")
        arrive(a, 20)
        a("s_branch L_exit")
    a(f"s_and_b32 s{S_T0}, s2, 7")
    a(f"s_sub_u32 s{S_T0}, s{S_T0}, 1")
    a(f"s_lshl_b32 s{S_T0}, s{S_T0}, 5")
    a(f"s_lshr_b32 s{S_T1}, s2, 3")
    a(f"s_add_u32 s{S_T0}, s{S_T0}, s{S_T1}")
    a(f"s_mul_i32 s{S_H}, s{S_T0}, 9363")
    a(f"s_lshr_b32 s{S_H}, s{S_H}, 16")
    a(f"s_mul_i32 s{S_T1}, s{S_H}, 7")
    a(f"s_sub_u32 s{S_SUB}, s{S_T0}, s{S_T1}")
    a(f"s_cmp_eq_u32 s{S_SUB}, 0")
    a(f"s_cselect_b32 s{S_NSEG}, 10, 9")
    a(f"s_cmp_lt_u32 s{S_H}, 28")
    a(f"s_cselect_b32 s{S_FFN}, 1, 0")
    lane_setup(a)
    srd(a, SRD_C, P_X, 2048 * 1024)

    def meanwhile():
        t0, t1, t2, t3 = (vr(x) for x in (V_T0, V_T1, V_T2, V_T3))
        a(f"v_mul_u32_u24 {t0}, 7, {vr(V_LANE)}")
        a(f"v_add_u32 {t0}, s{S_SUB}, {t0}")
        a(f"v_cmp_gt_u32 vcc, 64, {t0}")
        a(f"v_mov_b32 {t3}, {hex(OOB)}")
        a(f"v_lshlrev_b32 {t1}, 2, {t0}")
        a(f"v_cndmask_b32 {t1}, {t3}, {t1}, vcc")
        a(f"v_lshlrev_b32 {t2}, 9, {t0}")
        a(f"v_cndmask_b32 {t2}, {t3}, {t2}, vcc")
        a(f"v_mov_b32 {t0}, 0")
        a(f"s_lshl_b32 s{S_T0}, s{S_H}, 10")
        a(f"s_lshl_b32 s{S_T1}, s{S_W}, 8")
        a(f"s_add_u32 s{S_T0}, s{S_T0}, s{S_T1}")
        a(f"s_add_u32 s{S_T0}, s{S_T0}, {hex(FKV)}")
        a(f"buffer_store_dword {t0}, {t1}, {sr(SRD_WS,4)}, s{S_T0} offen sc1")
        a(f"s_lshl_b32 s{S_T0}, s{S_H}, 2")
        a(f"s_lshl_b32 s{S_T1}, s{S_W}, 7")
        a(f"s_add_u32 s{S_T0}, s{S_T0}, s{S_T1}")
        a(f"s_add_u32 s{S_T0}, s{S_T0}, {hex(FP)}")
        a(f"buffer_store_dword {t0}, {t2}, {sr(SRD_WS,4)}, s{S_T0} offen sc1")
        x_first(a)

    mark(a, 0, V_T0, dbg_base=6)
    phase1a(a, meanwhile, 10, P)
    mark(a, 2, V_T0, dbg_base=6)
    if P.get("f_exit") == 1:
        a("s_branch L_exit")
    phase1b(a, P)
    mark(a, 4, V_T0, dbg_base=6)
    if P.get("f_exit") == 2:
        a("s_branch L_exit")
    phase3(a, P)
    mark(a, 6, V_T0, dbg_base=6)
    a("s_branch L_exit")
```

```python
from asmlib import vr, ar, sr, Ins
from common import *

L_MEM, L_Q, L_K, L_OWN, L_SP, L_O, L_DUMMY, L_SEL, L_W = 0, 0x2000, 0x2900, 0x3200, 0x5600, 0x6600, 0x6E00, 0x7600, 0x8000
PS = 576
(V_L16, V_WL0, V_WL1, V_MW, V_QW, V_TRQ, V_W2, V_R2, V_OW, V_PS, V_MS, V_TD, V_VX, V_KMS, V_IDX, V_SPW) = range(16)
QA, KA, VA, KXF, VXF, TMP, ST, MEM = 16, 24, 32, 40, 48, 56, 64, 96
LDS_SET = [("q", 0, 0), ("q", 1, 0), ("k", 2, 0), ("k", 3, 0), ("v", 6, 0), ("v", 7, 0), ("o", 0, 3), ("o", 1, 3)]
_HOME = {}
for _m, _kk, _tp in [("o", kk, tp) for tp in range(4) for kk in range(2)] + [(m, kk, 0) for m in "kqv" for kk in range(8)]:
    if (_m, _kk, _tp) not in LDS_SET:
        _n = len(_HOME) * 16
        _HOME[(_m, _kk, _tp)] = ("a", _n) if _n < 256 else ("v", _n - 128)


def wreg(m, kk, et, tp=0):
    if (m, kk, tp) in LDS_SET:
        return "v", ST + 16 * (kk & 1) + 8 * et
    k, b = _HOME[(m, kk, tp)]
    return k, b + 8 * et


def wop(m, kk, et, tp=0):
    k, b = wreg(m, kk, et, tp)
    return (ar if k == "a" else vr)(b, 8)
S_S, S_W1K, S_KV, S_RPC, S_RPO, S_RMC, S_RMO, S_OFF, S_RPL, S_KMO, S_C, S_FMO, S_FKO = range(70, 83)
S_KVM = 84
S_T4, S_T5 = 86, 87
S_TK, S_TKH, S_TWO = 81, 77, 74
S_ONE, S_CC, S_VAL, S_RML, S_RMS, S_KOWN = 16, 18, 12, 14, 15, 83
DPP = "row_mask:0xf bank_mask:0xf"
SEG = [64]


def smf(a, d, x, w):
    a(f"v_smfmac_f32_16x16x64_bf16 {vr(d,4)}, {vr(x,4)}, {w}, {vr(V_IDX)}")


def lane_ids(a):
    T = list(range(100, 110))
    l, c, g, t0, t1, t2, t3, r, cc, f = (vr(x) for x in T)
    a(f"v_and_b32 {l}, 63, v0")
    a(f"v_and_b32 {c}, 15, {l}")
    a(f"v_lshrrev_b32 {g}, 4, {l}")
    a(f"v_bfe_u32 {r}, {l}, 2, 2")
    a(f"v_and_b32 {cc}, 3, {l}")
    a(f"s_lshl_b32 s{S_W1K}, s{S_W}, 10")


def setup_staging(a):
    T = list(range(100, 110))
    l, c, g, t0, t1, t2, t3, r, cc, f = (vr(x) for x in T)
    w = f"s{S_W}"
    a(f"s_lshl_b32 s{S_T0}, {w}, 1")
    a(f"v_and_b32 {f}, 1, {g}")
    a(f"v_or_b32 {f}, s{S_T0}, {f}")
    a(f"v_lshlrev_b32 {f}, 1, {f}")
    a(f"v_xor_b32 {t0}, {c}, {f}")
    a(f"s_lshl_b32 s{S_T0}, {w}, 2")
    a(f"v_add_u32 {t1}, s{S_T0}, {g}")
    a(f"v_lshlrev_b32 {t2}, 4, {t0}")
    a(f"v_lshl_add_u32 v116, {t1}, 13, {t2}")
    a(f"v_lshl_add_u32 v117, {t1}, 10, {t2}")
    a(f"v_lshrrev_b32 {t0}, 1, {g}")
    a(f"v_lshlrev_b32 {t0}, 4, {t0}")
    a(f"v_lshrrev_b32 {t1}, 1, {r}")
    a(f"v_lshl_add_u32 {t0}, {t1}, 3, {t0}")
    a(f"v_and_b32 {t2}, 1, {g}")
    a(f"v_lshl_add_u32 {t0}, {t2}, 2, {t0}")
    a(f"v_and_b32 {f}, 1, {r}")
    a(f"v_add_u32 {t0}, {t0}, {f}")
    a(f"v_lshl_add_u32 {f}, {t2}, 1, {f}")
    a(f"v_lshl_add_u32 {f}, {t1}, 2, {f}")
    a(f"v_lshlrev_b32 {f}, 1, {f}")
    a(f"v_lshrrev_b32 {t1}, 1, {cc}")
    a(f"v_add_u32 {t1}, s{S_T0}, {t1}")
    a(f"v_xor_b32 {t1}, {t1}, {f}")
    a(f"v_lshlrev_b32 {t1}, 4, {t1}")
    a(f"v_lshl_add_u32 {t0}, {t0}, 8, {t1}")
    a(f"v_and_b32 {t1}, 1, {cc}")
    a(f"v_lshl_add_u32 v118, {t1}, 3, {t0}")
    a("v_xor_b32 v119, 32, v118")


def setup(a):
    T = list(range(100, 110))
    l, c, g, t0, t1, t2, t3, r, cc, f = (vr(x) for x in T)
    w = f"s{S_W}"
    a(f"v_lshlrev_b32 {vr(V_L16)}, 4, {l}")
    a(f"v_add_u32 {vr(V_SPW)}, s{S_W1K}, {vr(V_L16)}")
    a(f"s_lshl_b32 s{S_T0}, {w}, 12")
    a(f"s_add_u32 s{S_T0}, s{S_T0}, {L_W}")
    a(f"v_add_u32 {vr(V_WL0)}, s{S_T0}, {vr(V_L16)}")
    a(f"v_add_u32 {vr(V_WL1)}, 0x10000, {vr(V_WL0)}")
    a(f"v_lshrrev_b32 {t0}, 5, {l}")
    a(f"v_bfe_u32 {t1}, {l}, 1, 1")
    a(f"v_lshl_add_u32 {t0}, {t0}, 1, {t1}")
    a(f"v_bfe_u32 {t1}, {l}, 2, 3")
    a(f"v_lshlrev_b32 {t1}, 5, {t1}")
    a(f"v_lshl_add_u32 {t0}, {t0}, 8, {t1}")
    a(f"v_and_b32 {t1}, 1, {l}")
    a(f"v_lshl_add_u32 {t0}, {t1}, 4, {t0}")
    a(f"s_lshl_b32 s{S_T0}, {w}, 11")
    a(f"v_add_u32 {vr(V_MW)}, s{S_T0}, {t0}")
    a(f"v_mul_u32_u24 {t0}, {PS}, {g}")
    a(f"v_lshl_add_u32 {t0}, {c}, 3, {t0}")
    a(f"s_and_b32 s{S_T0}, {w}, 1")
    a(f"s_lshl_b32 s{S_KOWN}, s{S_T0}, 7")
    a(f"s_lshr_b32 s{S_T1}, {w}, 1")
    a(f"s_lshl_b32 s{S_T1}, s{S_T1}, 2")
    a(f"s_add_u32 s{S_T0}, s{S_KOWN}, s{S_T1}")
    a(f"v_add_u32 {vr(V_QW)}, s{S_T0}, {t0}")
    a(f"s_mul_i32 s{S_T1}, {w}, 2304")
    a(f"s_add_u32 s{S_T1}, s{S_T1}, {L_OWN}")
    a(f"v_add_u32 {vr(V_W2)}, s{S_T1}, {t0}")
    a(f"v_mul_u32_u24 {t0}, {PS}, {cc}")
    a(f"v_and_b32 {t2}, 1, {g}")
    a(f"v_lshl_add_u32 {t2}, {t2}, 2, {r}")
    a(f"v_lshl_add_u32 {t0}, {t2}, 3, {t0}")
    a(f"v_lshrrev_b32 {t1}, 1, {g}")
    a(f"v_lshl_add_u32 {vr(V_TRQ)}, {t1}, 8, {t0}")
    a(f"v_lshl_add_u32 {t0}, {t1}, 7, {t0}")
    a(f"v_add_u32 {vr(V_R2)}, s{S_T1}, {t0}")
    a(f"v_lshlrev_b32 {t0}, 6, {r}")
    a(f"v_lshl_add_u32 {t0}, {t1}, 5, {t0}")
    a(f"v_and_b32 {t1}, 1, {cc}")
    a(f"v_lshl_add_u32 {t0}, {t1}, 4, {t0}")
    a(f"v_and_b32 {t2}, 1, {g}")
    a(f"v_lshl_add_u32 {t0}, {t2}, 3, {t0}")
    a(f"s_lshl_b32 s{S_T0}, {w}, 9")
    a(f"v_add_u32 {t0}, s{S_T0}, {t0}")
    a(f"v_xor_b32 {t2}, 8, {t0}")
    a(f"v_add_u32 {t2}, {L_DUMMY}, {t2}")
    a(f"v_add_u32 {t0}, {L_O}, {t0}")
    a(f"v_cmp_gt_u32 vcc, 2, {cc}")
    a(f"v_cndmask_b32 {vr(V_OW)}, {t2}, {t0}, vcc")
    a(f"v_mov_b32 {t0}, 0x4444")
    a(f"v_mov_b32 {t2}, 0xeeee")
    a(f"v_cndmask_b32 {vr(V_IDX)}, {t2}, {t0}, vcc")
    a(f"v_lshl_add_u32 {t0}, {r}, 1, {t1}")
    a(f"v_lshlrev_b32 {t0}, 4, {t0}")
    a(f"v_lshl_add_u32 {t0}, {g}, 7, {t0}")
    a(f"v_add_u32 {t0}, s{S_T0}, {t0}")
    a(f"v_mov_b32 {t3}, {hex(OOB)}")
    a(f"v_lshrrev_b32 {t1}, 1, {cc}")
    a(f"s_lshr_b32 s{S_T1}, {w}, 1")
    a(f"v_cmp_eq_u32 vcc, s{S_T1}, {t1}")
    a(f"v_cndmask_b32 {vr(V_KMS)}, {t3}, {t0}, vcc")
    a(f"v_lshrrev_b32 {t0}, 3, {c}")
    a(f"v_lshl_add_u32 {t0}, {g}, 1, {t0}")
    a(f"s_lshl_b32 s{S_T0}, {w}, 3")
    a(f"v_add_u32 {t0}, s{S_T0}, {t0}")
    a(f"v_and_b32 {t1}, 7, {c}")
    a(f"v_lshlrev_b32 {t1}, 3, {t1}")
    a(f"v_mul_u32_u24 {t0}, {128 * SEG[0]}, {t0}")
    a(f"v_add_u32 {vr(V_PS)}, {t0}, {t1}")
    a(f"v_lshrrev_b32 {t0}, 2, {l}")
    a(f"v_mul_u32_u24 {t0}, {SEG[0]}, {t0}")
    a(f"v_lshl_add_u32 {vr(V_TD)}, {cc}, 4, {t0}")
    a(f"v_lshlrev_b32 {t0}, 4, {g}")
    a(f"v_lshl_add_u32 {t0}, {c}, 2, {t0}")
    a(f"v_cmp_gt_u32 vcc, 4, {c}")
    a(f"v_cndmask_b32 {vr(V_MS)}, {t3}, {t0}, vcc")
    a(f"s_lshl_b32 s{S_T0}, {w}, 12")
    a(f"v_lshlrev_b32 {t0}, 9, {g}")
    a(f"v_add_u32 {t0}, s{S_T0}, {t0}")
    a(f"v_lshl_add_u32 {vr(V_VX)}, {c}, 4, {t0}")
    S = 112
    a(f"v_lshrrev_b32 {t0}, 2, {c}")
    a(f"v_and_b32 {t1}, 1, {c}")
    a(f"v_lshl_add_u32 {t0}, {t1}, 2, {t0}")
    a(f"v_and_b32 {t1}, 1, {t0}")
    a(f"v_lshrrev_b32 {t0}, 1, {t0}")
    a(f"v_lshlrev_b32 {t1}, 4, {t1}")
    a(f"v_mov_b32 {t2}, 0x3f80")
    a(f"v_lshlrev_b32 {t2}, {t1}, {t2}")
    a(f"v_and_b32 {t1}, 2, {c}")
    a(f"v_cmp_eq_u32 vcc, 0, {t1}")
    a(f"v_cndmask_b32 {t2}, 0, {t2}, vcc")
    for i in range(4):
        a(f"v_cmp_eq_u32 vcc, {i}, {t0}")
        a(f"v_cndmask_b32 {vr(S + i)}, 0, {t2}, vcc")
    a(f"ds_write_b128 {vr(V_L16)}, {vr(S,4)} offset:{L_SEL}")
    a("v_mov_b64 v[120:121], 0")
    a("v_mov_b64 v[122:123], 0")
    for i in range(3):
        a(f"ds_write_b128 {vr(V_SPW)}, v[120:123] offset:{L_OWN + i * 4096}")


def init_handoffs(a):
    a("s_waitcnt lgkmcnt(0)")
    a("v_mov_b64 v[120:121], -1")
    a("v_mov_b64 v[122:123], -1")
    sg = SEG[0]
    a(f"s_mul_i32 s{S_RPC}, s{S_H}, {sg}")
    a(f"s_mul_i32 s{S_T0}, s{S_W}, {32 * sg}")
    a(f"s_add_u32 s{S_RMC}, s{S_RPC}, s{S_T0}")
    a(f"s_add_u32 s{S_RMC}, s{S_RMC}, {hex(RM)}")
    a(f"s_add_u32 s{S_RMO}, s{S_RMC}, 0x4000")
    a(f"s_add_u32 s{S_RPC}, s{S_RPC}, {hex(RP)}")
    a(f"s_mul_i32 s{S_RPL}, s{S_H}, {128 * sg}")
    a(f"s_add_u32 s{S_RPL}, s{S_RPL}, s{S_T0}")
    a(f"s_add_u32 s{S_RPL}, s{S_RPL}, {hex(RP)}")
    a(f"s_add_u32 s{S_T1}, s{S_RPL}, 0x80000")
    for base in (S_RPL, S_T1):
        for i in range(2):
            a(f"buffer_store_dwordx4 v[120:123], {vr(V_TD)}, {sr(SRD_WS,4)}, s{base} offen offset:{i * 16 * sg} sc1")
    for base in (S_RMC, S_RMO):
        a(f"buffer_store_dword v120, {vr(V_MS)}, {sr(SRD_WS,4)}, s{base} offen sc1")
    a(f"s_lshl_b32 s{S_TK}, s{S_W}, 8")
    a(f"s_add_u32 s{S_TK}, s{S_TK}, {hex(TICK)}")
    a(f"s_lshl_b32 s{S_TKH}, s{S_H}, 2")
    a(f"s_add_u32 s{S_TKH}, s{S_TKH}, s{S_TK}")
    a(f"s_mov_b32 s{S_TWO}, 1")
    a(f"s_mov_b32 s{S_TWO + 1}, 1")
    a("v_mov_b32 v126, 0")
    a(f"v_lshrrev_b32 v127, 2, {vr(V_L16)}")
    a(f"s_mov_b64 exec, {sr(S_TWO,2)}")
    a(f"buffer_store_dword v126, v127, {sr(SRD_WS,4)}, s{S_TKH} offen sc1")
    a("s_mov_b64 exec, -1")
    srd(a, SRD_C, P_DBG, 256)
    a(f"s_getreg_b32 s{S_T0}, hwreg(HW_REG_XCC_ID, 0, 4)")
    a(f"s_lshl_b32 s{S_T0}, 1, s{S_T0}")
    a(f"v_mov_b32 v124, s{S_T0}")
    a(f"s_cmp_lg_u32 s{S_W}, 0")
    a("s_cbranch_scc1 L_noxcc")
    a("s_mov_b64 exec, 1")
    a(f"buffer_atomic_or v124, off, {sr(SRD_C,4)}, 0 offset:128")
    a("s_mov_b64 exec, -1")
    a("L_noxcc:")


def load_weights(a, meanwhile, extra, hooks, order, depth):
    chunks = [(m, kk, 0) for m in "qkv" for kk in range(8)] + [("o", kk, tp) for tp in range(4) for kk in range(2)]
    chunks = [c for c in chunks if c not in LDS_SET]
    if order.startswith("rr"):
        per = {m: [c for c in chunks if c[0] == m] for m in "oqkv"}
        chunks = [per[m][i] for i in range(6) for m in order[2:]]
    else:
        chunks = sorted(chunks, key=lambda c: order.index(c[0]))
    chunks += LDS_SET
    ptr = {"q": P_WQ, "k": P_WK, "v": P_WV, "o": P_WO}
    a(f"s_lshl_b32 s{S_T4}, s{S_H}, 8")
    a(f"s_lshl_b32 s{S_T5}, s{S_H}, 17")

    def issue(c):
        m, kk, tp = chunks[c]
        if c == 0 or chunks[c - 1][0] != m:
            srd(a, SRD_A, ptr[m], 512 * 8192)
        for i in range(4):
            a(f"s_add_u32 m0, s{S_W1K}, {L_W + (c % 8) * 16384 + i * 4096}")
            if m == "o":
                a(f"s_add_u32 s{S_T0}, s{S_T5}, {(64 * kk + 16 * i) * 1024 + tp * 256}")
                a(f"buffer_load_dwordx4 v117, {sr(SRD_A,4)}, s{S_T0} offen lds")
            else:
                a(f"s_add_u32 s{S_T0}, s{S_T4}, {(64 * kk + 16 * i) * 8192}")
                a(f"buffer_load_dwordx4 v116, {sr(SRD_A,4)}, s{S_T0} offen lds")

    def dest(c, et):
        m, kk, tp = chunks[c]
        return wreg(m, kk, et, tp)

    def consume(c):
        for et in range(2):
            a(f"v_add_u32 v{114 + et}, {L_W + (c % 8) * 16384}, v{118 + et}")
        for et in range(2):
            k, b = dest(c, et)
            for q in range(4):
                reg = (ar if k == "a" else vr)(b + 2 * q, 2)
                a(f"ds_read_b64_tr_b16 {reg}, v{114 + et} offset:{(32 * (q >> 1) + 2 * (q & 1)) * 256}")

    def writeback(c):
        base = V_WL0 if (c % 8) < 4 else V_WL1
        for i in range(4):
            a(f"ds_write_b128 {vr(base)}, {vr(ST + 16 * (c & 1) + 4 * i, 4)} offset:{(c % 4) * 16384 + i * 1024}")

    def after(c):
        if c % 4 == 0 and TRACE_ON[0] == 1:
            mark(a, 20 + c // 4, 124)
        if c == 7:
            arrive(a, 125)
        if c in hooks:
            hooks[c]()
        if c >= 25:
            writeback(c - 1)

    def throttle():
        L = a.uid("L_thr")
        a(f"s_and_b32 s{S_T0}, s{S_H}, 3")
        a(f"s_cmp_eq_u32 s{S_T0}, 1")
        a(f"s_cbranch_scc1 {L}")
        a(f"s_waitcnt vmcnt({4 * (depth - 1)})")
        a(f"{L}:")

    stage(a, 32, 8, issue, consume, after, meanwhile, extra, throttle if depth else None)
    a("s_barrier")
    writeback(31)


def wl_read(a, dst, slot, et, half):
    base = V_WL0 if slot < 4 else V_WL1
    a(f"ds_read_b128 {vr(dst + 8 * et + 4 * half, 4)}, {vr(base)} offset:{(slot % 4) * 16384 + et * 2048 + half * 1024}")


def wl_chunk(a, dst, slot):
    for et in range(2):
        for half in range(2):
            wl_read(a, dst, slot, et, half)


def kv_poll(a, L, s_seg, vt):
    a(f"v_lshrrev_b32 {vr(vt)}, 2, {vr(V_L16)}")
    a(f"{L}_p:")
    a(f"buffer_load_dword {vr(vt + 1)}, {vr(vt)}, {sr(SRD_WS,4)}, s{S_FKO} offen sc1")
    a("s_waitcnt vmcnt(0)")
    a(f"v_cmp_eq_u32 {sr(S_KVM,2)}, 1, {vr(vt + 1)}")
    a(f"s_bitcmp1_b64 {sr(S_KVM,2)}, s{s_seg}")
    a(f"s_cbranch_scc1 {L}_ok")
    timeout(a, f"{L}_p")


def fold(pk, d, out, scale=False):
    if pk:
        r = [f"v_pk_add_f32 {vr(d,2)}, {vr(d,2)}, {vr(d + 2, 2)}"]
        if scale:
            r.append(f"v_pk_mul_f32 {vr(d,2)}, {vr(d,2)}, {sr(S_CC,2)}")
    else:
        r = [f"v_add_f32 {vr(d + i)}, {vr(d + i)}, {vr(d + 2 + i)}" for i in range(2)]
        if scale:
            r += [f"v_mul_f32 {vr(d + i)}, s{S_CC}, {vr(d + i)}" for i in range(2)]
    return r + [f"v_cvt_pk_bf16_f32 {vr(out)}, {vr(d)}, {vr(d + 1)}"]


def zip2(x, y):
    return [z for p in zip(x, y) for z in p]


def weave(a, mf, fill, report=None):
    parts = [[l for l in m.split("\n") if l.strip()] for m in mf]
    for x in parts[0][:-1]:
        a(x)
    for i, m in enumerate(parts):
        a(m[-1])
        first, last, written = [], [], set()
        for x in fill.pop(i, []):
            lines = [l for l in x.split("\n") if l.strip()]
            head = lines[0]
            if head.startswith("v_"):
                last.append(x)
                written |= Ins(head).w
            elif not head.startswith(("WAIT", "s_barrier")) and Ins(head).r & written:
                last.append(x)
            elif head.startswith("WAIT") and last and not last[-1].startswith("v_"):
                last.append(x)
            else:
                first.append(x)
        lead = parts[i + 1][:-1] if i + 1 < len(parts) else []
        if any(not x.startswith("v_") for x in last):
            order = first + last + lead
        else:
            order = first + lead + last
        if report is not None:
            report.append((i, len(first) + len(lead), len(last)))
        for x in order:
            a(x)
    assert not fill, fill


def spread(fill, start, items, per=2):
    s = start
    for x in items:
        while len(fill.setdefault(s, [])) >= per:
            s += 1
        fill[s].append(x)
    return s


def smfs(d, x, w):
    return f"v_smfmac_f32_16x16x64_bf16 {vr(d,4)}, {vr(x,4)}, {w}, {vr(V_IDX)}"


def wl_list(dst, slot):
    base = V_WL0 if slot < 4 else V_WL1
    return [f"ds_read_b128 {vr(dst + 4 * i, 4)}, {vr(base)} offset:{(slot % 4) * 16384 + i * 1024}" for i in range(4)]


def cost(x):
    if x.startswith("ds_read_b128"):
        return 10
    if x.startswith("buffer"):
        return 16
    return 4


def timed(a, work, budget):
    while work and budget >= cost(work[0]):
        budget -= cost(work[0])
        a(work.pop(0))
    a.nops(budget)


def check(a, b, t):
    a(f"v_max3_u32 {vr(t)}, {vr(b)}, {vr(b + 1)}, {vr(b + 2)} ; nocheck")
    a(f"v_max3_u32 {vr(t + 1)}, {vr(b + 3)}, {vr(b + 4)}, {vr(b + 5)} ; nocheck")
    a(f"v_max3_u32 {vr(t)}, {vr(t)}, {vr(b + 6)}, {vr(b + 7)} ; nocheck")
    a(f"v_max_u32 {vr(t)}, {vr(t)}, {vr(t + 1)}")
    a(f"v_cmp_eq_u32 vcc, -1, {vr(t)}")


def poll_issue(a, tag, issue, bufs, d, gap, work, first=(), timed_extra=()):
    a.nops(d)
    stamp(a, tag[-2:] + "i")
    for x in first:
        a(x)
    issue(bufs[0])
    events = sorted([(gap * k, b) for k, b in enumerate(bufs) if k] + list(timed_extra), key=lambda e: e[0])
    now, order = 24, []
    for t, e in events:
        timed(a, work, max(0, t - now))
        now = max(now, t)
        if isinstance(e, str):
            a(e)
            now += 8
            order.append(e)
        else:
            issue(e)
            now += 24
            order += [e, e]
    for x in work:
        a(x)
    return order


def retry(a, tag, issue, b, t, depth, gap, flying, count=None):
    a("s_mov_b64 exec, vcc")
    for k in range(depth - flying):
        if k:
            a.nops(gap)
        issue(b)
    a(f"{tag}_retry:")
    a(f"s_waitcnt vmcnt({2 * (depth - 1)})")
    check(a, b, t)
    a(f"s_cbranch_vccz {tag}_fix")
    a("s_mov_b64 exec, vcc")
    issue(b)
    if count:
        a(count)
    timeout(a, f"{tag}_retry")
    a(f"{tag}_fix:")
    a("s_mov_b64 exec, -1")


def kvm_stores():
    return [f"buffer_store_dwordx4 {vr(KA + 4, 4)}, {vr(V_SPW)}, {sr(SRD_WS,4)}, s{S_KMO} offen offset:2048 sc1",
            f"buffer_store_dwordx4 {vr(TMP + 4, 4)}, {vr(V_KMS)}, {sr(SRD_WS,4)}, s{S_KMO} offen sc1"]


def publish_kvm(a):
    for x in kvm_stores():
        a(x)


STAMPS = []
STAMP_OP = ['s_memtime']


def stamp_s(name):
    if TRACE_ON[0] == 1 and name in STAMPS:
        i = STAMPS.index(name)
        if name == "rt":
            return f"s_memrealtime s[{88 + 2 * i}:{89 + 2 * i}]"
        return f"{STAMP_OP[0]} s[{88 + 2 * i}:{89 + 2 * i}]"
    return ""


def stamp(a, name):
    a(stamp_s(name))


def stamp_fold(a):
    if TRACE_ON[0] == 1:
        for i in range(len(STAMPS) - 1):
            a(f"s_sub_u32 s39, s{90 + 2 * i}, s{88 + 2 * i}")
            a(f"s_add_u32 s{28 + i}, s{28 + i}, s39")


def step_loop(a, name, st, P):
    ws = sr(SRD_WS, 4)
    pkq, pkv, pko = P["pkq"], P["pkv"], P["pko"]
    STAMPS[:] = P.get("stamps", ["top", "vend", "owr", "b3", "wo", "h1", "h2"])
    STAMP_OP[0] = "s_memrealtime" if P.get("rt") else "s_memtime"
    cold = []
    PSO = (S_RPC, S_T4, S_T0, S_T5)
    VP, LA, ONE, EX, EM, ZQ = KA + 4, ST + 4, ST, ST + 8, ST + 12, ST + 16
    QP = f"quad_perm:[2,3,0,1] {DPP}"
    memrd = [f"ds_read_b128 {vr(MEM + 4 * kk, 4)}, {vr(V_L16)} offset:{L_MEM + kk * 1024}" for kk in range(8)]
    vmf = lambda kks: [smfs(VA + 4 * et, MEM + 4 * kk, wop("v", kk, et)) for kk in kks for et in range(2)]
    ref1, ref2, ref3 = (wl_list(ST, 2 * g) + wl_list(ST + 16, 2 * g + 1) for g in (1, 2, 3))
    kwrite = f"ds_write2st64_b32 {vr(V_QW)}, {vr(KA + 2)}, {vr(KA + 3)} offset0:{L_K // 256} offset1:{L_K // 256 + 1}"
    kown = [f"v_add_u32 {vr(TMP + 4)}, s{S_KOWN}, {vr(V_TRQ)}",
            f"ds_read_b64_tr_b16 {vr(TMP + 6, 2)}, {vr(TMP + 4)} offset:{L_K + 64}",
            f"ds_read_b64_tr_b16 {vr(TMP + 4, 2)}, {vr(TMP + 4)} offset:{L_K}"]

    a(f"{name}:")
    a.skip = set(P.get("skip", ()))
    a("s_waitcnt lgkmcnt(0)")
    stamp_fold(a)
    a("s_barrier")
    stamp(a, "top")
    stamp(a, "rt")
    for x in memrd[:8 - len(P["mem_at"])]:
        a(x)
    for k in range(P["busy_top"]):
        a(f"v_mfma_f32_16x16x32_bf16 {vr(MEM + 28, 4)}, {vr(KXF,4)}, {vr(KXF,4)}, 0")
    rmre = f"buffer_store_dword {vr(TMP)}, {vr(V_MS)}, {ws}, s{S_RMO} offen {st}"
    rein = [f"buffer_store_dwordx4 {vr(TMP,4)}, {vr(V_TD)}, {ws}, s{S_T1} offen offset:{i * 16 * SEG[0]} {st}" for i in range(2)]
    vload = [f"buffer_load_dwordx4 {vr(VXF + 4 * et, 4)}, {vr(V_VX)}, {ws}, s{S_KV} offen offset:{VX + et * 256} sc1" for et in range(2)]
    mf, fill = [], {}
    put = lambda sl, *xs: fill.setdefault(sl, []).extend(xs)
    def order(split, kks=range(8)):
        kks = list(kks)
        return [(kk, et) for kk in kks[:split] for et in range(2)] + [(kk, et) for et in range(2) for kk in kks[split:]]
    for kk, et in order(P["q_split"]):
        mf.append((f"WAITL {memrd[kk]}\n" if et == 0 else "") + smfs(QA + 4 * et, MEM + 4 * kk, wop("q", kk, et)))
    for k, sl in enumerate(P["mem_at"]):
        put(sl, memrd[8 - len(P["mem_at"]) + k])
    for sl, x in zip(P["ref1_at"], ref1):
        put(sl, x)
    for sl, x in zip(P["pub_at"], vload + [rmre] + rein + kvm_stores()[:1]):
        if sl == -1:
            a(x)
        elif sl is not None:
            put(sl, x)
    put(P["kz_at"], f"v_mov_b64 {vr(KA + 4, 2)}, 0")
    put(P["kz_at"] + 1, f"v_mov_b64 {vr(KA + 6, 2)}, 0")
    for sl, n in P["nop_at"]:
        put(sl, f"s_nop {n}")
    cst = [f"v_mov_b64 {vr(ONE,2)}, {sr(S_ONE,2)}", f"v_mov_b64 {vr(ONE + 2, 2)}, {sr(S_ONE,2)}", f"v_mov_b64 {vr(EM,2)}, 0",
           f"v_mov_b32 {vr(EM + 3)}, 0", f"v_mov_b64 {vr(ZQ,2)}, 0", f"v_mov_b64 {vr(ZQ + 2, 2)}, 0"]
    for sl, x in zip(P["cst_at"], cst):
        put(sl, x)

    kmf = [smfs(KA + 4 * et, MEM + 4 * kk, wop("k", kk, et)) for kk in range(8) for et in range(2)]
    sx = P["sx_at"]
    lo = [f"ds_read_b64_tr_b16 {vr(QA + 4 * hi + 2 * jh, 2)}, {vr(V_R2)} offset:{256 * hi + 64 * jh}" for hi in range(2) for jh in range(2)]
    km2 = [(f"WAITL {ref1[4 * (kk - 2) + 2 * et + 1]}\n" if kk in (2, 3) else "") + kmf[2 * kk + et] for kk, et in order(P["k_split"], P["k_order"])]
    mf += km2[:sx]
    mf.append(f"WAITL {lo[1]}\nv_mfma_f32_16x16x32_bf16 {vr(TMP,4)}, {vr(KXF,4)}, {vr(QA,4)}, 0")
    mf.append(f"WAITL {lo[3]}\nv_mfma_f32_16x16x32_bf16 {vr(TMP,4)}, {vr(KXF + 4, 4)}, {vr(QA + 4, 4)}, {vr(TMP,4)}")
    mf += km2[sx:]
    for sl, x in zip(P["ref2_at"], ref2):
        put(sl, x)
    qp = fold(pkq, QA, TMP, True) + fold(pkq, QA + 4, TMP + 1, True)
    qp += [f"ds_write2_b32 {vr(V_W2)}, {vr(TMP)}, {vr(TMP + 1)} offset0:{o} offset1:{o + 32}" for o in (0, 65)] + lo + [
        f"ds_write2st64_b32 {vr(V_QW)}, {vr(TMP)}, {vr(TMP + 1)} offset0:{L_Q // 256} offset1:{L_Q // 256 + 1}"]
    for sl, x in sorted(zip(P["qp_at"], qp), key=lambda t: t[0]):
        put(sl, x)
    n1 = 16 + sx
    n2 = len(mf)
    rest = [(f"WAITL {ref2[4 * (kk - 6) + 2 * et + 1]}\n" if kk > 5 else "") + vmf([kk])[et]
            for kk, et in order(P["v_split"], P["v_order"])]
    for T, sl in enumerate(P["kld_at"]):
        put(sl, f"buffer_load_dwordx4 {vr(KXF + 4 * T, 4)}, {vr(V_VX)}, {ws}, s{S_T2} offen offset:{T * 256} sc1")
    put(P["sp_at"], f"ds_write_b128 {vr(V_SPW)}, {vr(TMP,4)} offset:{L_SP}")
    kp = fold(pkq, KA, KA + 2) + fold(pkq, KA + 4, KA + 3)
    for sl, x in sorted(zip(P["kp_at"], kp + [kwrite]), key=lambda t: t[0]):
        put(sl, x)
    vp = fold(False, VA, VP) + fold(pkv, VA + 4, VP + 2)
    nvp = len(P["vp_at"])
    for sl, x in zip(P["vp_at"], vp):
        put(sl, x)
    bar = P["bar_at"]
    post = [f"ds_read_b128 {vr(MEM + 4 * i, 4)}, {vr(V_L16)} offset:{L_SP + i * 1024}" for i in range(4)]
    post += [f"ds_read_b64_tr_b16 {vr(dst + 4 * ks + 2 * jh, 2)}, {vr(V_TRQ)} offset:{buf + 128 * ks + 64 * jh}"
             for ks in range(2) for jh in range(2) for dst, buf in ((KA, L_K), (QA, L_Q))]
    allpost = list(post)
    l1 = [f"v_add_f32 {vr(MEM + b + r)}, {vr(MEM + b + r)}, {vr(MEM + b + 4 + r)}" for b in (0, 8) for r in range(4)]
    for k, sl in enumerate(P["l1_at"]):
        if k in (0, 4):
            put(sl, f"WAITL {post[1 + k // 2]}")
        put(sl, l1[k])
    put(n2 + bar - P["km_back"], kvm_stores()[1] + f"\ns_add_u32 s{S_KMO}, s{S_KV}, {hex(KM)}")
    put(n2 + bar, f"WAITL {kwrite}\ns_barrier ; nocheck")
    for i in range(len(rest) - 1 - bar):
        take, post = post[:P["post_per"]], post[P["post_per"]:]
        put(n2 + bar + i, *take)
    mf += rest
    for k, nm in ((1, "q0"), (16, "qend"), (n1, "sxpre"), (n2, "kend"), (n2 + bar, "b2pre"), (n2 + bar + 1, "b2post")):
        mf[k] = stamp_s(nm) + "\n" + mf[k]
    weave(a, mf, fill)
    for x in post:
        a(x)
    stamp(a, "vend")
    smm = [f"WAITL {allpost[7]}\nv_mfma_f32_16x16x32_bf16 {vr(TMP + 4, 4)}, {vr(KA,4)}, {vr(QA,4)}, 0",
           f"WAITL {allpost[11]}\nv_mfma_f32_16x16x32_bf16 {vr(TMP + 4, 4)}, {vr(KA + 4, 4)}, {vr(QA + 4, 4)}, {vr(TMP + 4, 4)}"]
    exps = [f"v_exp_f32 {vr(EX + r)}, {vr(TMP + r)}" for r in range(4)]
    p1 = [f"v_pk_add_f32 {vr(MEM + b + h, 2)}, {vr(MEM + b + h, 2)}, {vr(MEM + b + 4 + h, 2)}" for b in (0, 8) for h in (0, 2)]
    p2 = [f"v_pk_add_f32 {vr(TMP + h, 2)}, {vr(MEM + h, 2)}, {vr(MEM + 8 + h, 2)}" for h in (0, 2)]
    a(f"WAITL {allpost[3]}")
    seq = p1[len(P["l1_at"]) // 2:] + p2 + [smm[0], exps[0], smm[1]] + exps[1:]
    for x in seq:
        a(x)
    stamp(a, "sum")
    a(f"v_cvt_pk_bf16_f32 {vr(QA)}, {vr(EX)}, {vr(EX + 1)}")
    a(vp[nvp])
    a(f"v_cvt_pk_bf16_f32 {vr(QA + 1)}, {vr(EX + 2)}, {vr(EX + 3)}")
    for x in vp[nvp + 1:]:
        a(x)
    for j in range(2):
        a(f"v_mov_b32_dpp {vr(QA + 2 + j)}, {vr(QA + j)} {QP}")
    for j in range(2):
        a(f"v_add_f32_dpp {vr(TMP + 4 + j)}, {vr(TMP + 6 + j)}, {vr(TMP + 4 + j)} {QP}")
    stamp(a, "pvpre")
    a(f"WAITV {rmre}".rstrip())
    if P.get("drop"):
        a("s_waitcnt vmcnt(3)")
    stamp(a, "pvgo")

    def pv_x():
        return [f"v_mfma_f32_16x16x32_bf16 {vr(LA,4)}, {vr(ONE,4)}, {vr(QA,4)}, 0",
                f"v_mfma_f32_16x16x32_bf16 {vr(VA,4)}, {vr(VXF,4)}, {vr(QA,4)}, 0",
                f"v_mfma_f32_16x16x32_bf16 {vr(VA + 4, 4)}, {vr(VXF + 4, 4)}, {vr(QA,4)}, 0"]

    def pv_m():
        return [f"v_mfma_f32_16x16x32_bf16 {vr(LA,4)}, {vr(ONE,4)}, {vr(EM + 2, 4)}, {vr(LA,4)}",
                f"v_mfma_f32_16x16x32_bf16 {vr(VA,4)}, {vr(VP,4)}, {vr(EM + 2, 4)}, {vr(VA,4)}",
                f"v_mfma_f32_16x16x32_bf16 {vr(VA + 4, 4)}, {vr(VP,4)}, {vr(EM,4)}, {vr(VA + 4, 4)}"]
    chk = [f"v_max3_f32 {vr(TMP + 6)}, |{vr(TMP)}|, |{vr(TMP + 1)}|, |{vr(TMP + 2)}|",
           f"v_max3_f32 {vr(TMP + 7)}, |{vr(TMP + 3)}|, |{vr(TMP + 4)}|, |{vr(TMP + 5)}|",
           f"v_max_f32 {vr(TMP + 6)}, {vr(TMP + 6)}, {vr(TMP + 7)}",
           f"v_cmp_ngt_f32 vcc, {f32(32.0)}, {vr(TMP + 6)}"]
    weave(a, pv_x() + pv_m(), {
        0: [f"v_exp_f32 {vr(EX)}, {vr(TMP + 4)}"],
        1: [f"v_exp_f32 {vr(EX + 1)}, {vr(TMP + 5)}"],
        2: [f"v_cvt_pk_bf16_f32 {vr(EM + 2)}, {vr(EX)}, {vr(EX + 1)}"] + chk[:2],
        3: chk[2:], 4: [], 5: [f"s_cbranch_vccnz {name}_max" if "skip" not in P else "s_cbranch_execz L_exit"]})
    a(f"{name}_pv:")
    stamp(a, "pvend")

    def true_max():
        m, t = vr(TMP + 6), vr(TMP + 7)
        a(f"{name}_max:")
        for j in range(2):
            a(f"v_mov_b32_dpp {vr(TMP + 4 + j)}, {vr(TMP + 4 + j)} quad_perm:[0,1,0,1] {DPP}")
        a(f"v_max3_f32 {m}, {vr(TMP)}, {vr(TMP + 1)}, {vr(TMP + 2)}")
        a(f"v_max3_f32 {t}, {vr(TMP + 3)}, {vr(TMP + 4)}, {vr(TMP + 5)}")
        a(f"v_max_f32 {m}, {m}, {t}")
        a(f"v_max_f32_dpp {m}, {m}, {m} {QP}")
        for sw in ("v_permlane16_swap_b32", "v_permlane32_swap_b32"):
            a(f"v_mov_b32 {t}, {m}")
            a(f"{sw} {m}, {t}")
            a(f"v_max_f32 {m}, {m}, {t}")
        for r in range(6):
            a(f"v_sub_f32 {vr(TMP + r)}, {vr(TMP + r)}, {m}")
            a(f"v_exp_f32 {vr(TMP + r)}, {vr(TMP + r)}")
        for j in range(2):
            a(f"v_cvt_pk_bf16_f32 {vr(QA + j)}, {vr(TMP + 2 * j)}, {vr(TMP + 2 * j + 1)}")
        a(f"v_cvt_pk_bf16_f32 {vr(EM + 2)}, {vr(TMP + 4)}, {vr(TMP + 5)}")
        for j in range(2):
            a(f"v_mov_b32_dpp {vr(QA + 2 + j)}, {vr(QA + j)} {QP}")
        for x in pv_x() + pv_m():
            a(x)
        a("s_nop 7")
        a(f"s_branch {name}_pv")
    cold.append(true_max)
    a(f"v_rcp_f32 {vr(TMP)}, {vr(LA)}")
    for et in range(2):
        if pkv:
            for j in range(2):
                a(f"v_pk_mul_f32 {vr(VA + 4 * et + 2 * j, 2)}, {vr(VA + 4 * et + 2 * j, 2)}, {vr(TMP,2)} op_sel_hi:[1,0]")
        else:
            for j in range(4):
                a(f"v_mul_f32 {vr(VA + 4 * et + j)}, {vr(VA + 4 * et + j)}, {vr(TMP)}")
        for j in range(2):
            a(f"v_cvt_pk_bf16_f32 {vr(QA + 2 * et + j)}, {vr(VA + 4 * et + 2 * j)}, {vr(VA + 4 * et + 2 * j + 1)}")
        a(f"ds_write_b64 {vr(V_OW)}, {vr(QA + 2 * et, 2)} offset:{256 * et}")
    stamp(a, "owr")
    for h in range(2):
        a(f"v_mfma_f32_32x32x16_bf16 {vr(MEM + 16 * h, 16)}, {vr(ZQ,4)}, {vr(ZQ,4)}, 0")
    rein3 = []
    if P["pub_at"][4] is None and P["rein_end"] < 2:
        a(f"v_mov_b64 {vr(VA,2)}, -1")
        a(f"v_mov_b64 {vr(VA + 2, 2)}, -1")
        rein3 = [f"buffer_store_dwordx4 {vr(VA,4)}, {vr(V_TD)}, {ws}, s{S_T1} offen offset:{16 * SEG[0]} {st}"]
    for tp in range(1, 4):
        if SEG[0] > 64 or tp == 2:
            a(f"s_add_u32 s{PSO[tp]}, s{S_RPC}, {tp * 32 * SEG[0]}")
    busy = lambda d: f"v_mfma_f32_16x16x32_bf16 {vr(d,4)}, {vr(KXF,4)}, {vr(KXF,4)}, 0 ; nocheck"
    for k in range(P["busy_b3"][0]):
        a(busy(VA + 4))
    a("s_waitcnt lgkmcnt(0)")
    a("s_barrier")
    stamp(a, "b3")
    for kk in range(2):
        a(f"ds_read_b128 {vr(QA + 4 * kk, 4)}, {vr(V_L16)} offset:{L_O + kk * 1024}")
    r3 = [ref3[i] for i in (0, 1, 4, 5, 2, 3, 6, 7)]
    for x in rein3 + r3[:P["ref3_pre"]]:
        a(x)
    for k in range(P["busy_b3"][1]):
        a(busy(VA + 4))
    mf, fill = [], {}
    outs = {0: TMP, 1: TMP + 2, 2: KA, 3: KA + 2}

    def wpost(tp):
        o = outs[tp]
        return zip2(fold(pko, MEM + 8 * tp, o), fold(pko, MEM + 8 * tp + 4, o + 1)) + [
            f"buffer_store_dwordx2 {vr(o,2)}, {vr(V_PS)}, {ws}, s{PSO[tp] if SEG[0] > 64 else PSO[tp & 2]} offen offset:{0 if SEG[0] > 64 else (tp & 1) * 2048} {st}"]
    for t in range(8):
        for kk in range(2):
            mf.append(smfs(MEM + 4 * t, QA + 4 * kk, wop("o", kk, t & 1, t >> 1)))
    for kk in range(2):
        mf[kk] = f"WAITL ds_read_b128 {vr(QA + 4 * kk, 4)}, {vr(V_L16)} offset:{L_O + kk * 1024}\n" + mf[kk]
    fill = {2: ["s_nop 0"], 3: ["s_nop 0"]}
    for k, x in enumerate(r3[P["ref3_pre"]:]):
        fill.setdefault(k * P["ref3_step"], []).append(x)
    for k, i in enumerate((1, 5, 3, 7)):
        mf[12 + k] = f"WAITL {ref3[i]}\n" + mf[12 + k]
    tailv = []
    for t in range(8):
        o = outs[t >> 1] + (t & 1)
        ops = fold(False, MEM + 4 * t, o)
        for k, x in enumerate(ops + ([wpost(t >> 1)[-1]] if t & 1 else [])):
            sl = 2 * t + 4 + (0 if k < P["wsplit"] else 1 if k < 3 else 2)
            if sl > 15:
                tailv.append(x)
            else:
                fill.setdefault(sl, []).append(x)
    weave(a, mf, fill)
    for x in tailv:
        a(x)
    stamp(a, "wo")
    a.skip = set()
    H1, SEL, RED, H2B, CT = (MEM, MEM + 16), MEM + 8, MEM + 12, MEM + 16, MEM + 26
    for w in (3, 2, 1):
        a(f"s_cmp_eq_u32 s{S_W}, {w}")
        a(f"s_cbranch_scc1 {name}_w{w}")
    for w in range(4):
        tag = f"{name}_w{w}"
        a(f"{tag}:")
        selrd = f"ds_read_b128 {vr(SEL,4)}, {vr(V_L16)} offset:{L_SEL}"
        work = [selrd] + kown + wl_list(ST, 0) + wl_list(ST + 16, 1)
        zero = [f"v_mov_b64 {vr(x + 2 * j, 2)}, 0" for x in (QA, VA) for j in range(4)]
        zero += [f"v_mov_b64 {vr(KA + 2 * j, 2)}, 0" for j in range(2)] + [f"v_mov_b64 {vr(TMP + 2 * j, 2)}, -1" for j in range(2)]
        work = work[:4] + zip2(work[4:], zero[:8]) + zero[8:]

        def issue1(b):
            for i in range(2):
                a(f"buffer_load_dwordx4 {vr(b + 4 * i, 4)}, {vr(V_TD)}, {ws}, s{S_RPL} offen offset:{i * 16 * SEG[0]} sc1")

        def use1(b, left):
            if left is not None:
                a(f"s_waitcnt vmcnt({left + 1})")
            a(f"v_mfma_f32_16x16x32_bf16 {vr(RED,4)}, {vr(SEL,4)}, {vr(b,4)}, 0 ; nocheck")
            if left is not None:
                a(f"s_waitcnt vmcnt({left})")
                stamp(a, "h1a")
            a(f"v_mfma_f32_16x16x32_bf16 {vr(RED,4)}, {vr(SEL,4)}, {vr(b + 4, 4)}, {vr(RED,4)} ; nocheck")
            a("s_nop 7")
            for rot in (4, 8):
                for j in range(2):
                    a(f"v_add_f32_dpp {vr(RED + j)}, {vr(RED + j)}, {vr(RED + j)} row_ror:{rot} {DPP}")
                if rot == 4:
                    a(f"v_cmp_u_f32 vcc, {vr(RED + 2)}, {vr(RED + 2)}")
            a(f"v_cvt_pk_bf16_f32 {vr(RED)}, {vr(RED)}, {vr(RED + 1)}")
        n1 = P["n1"][w]
        pace = P["pace"] if st == "" else ()
        TA = MEM + 28
        probe = f"buffer_load_dword {vr(TA + 2)}, {vr(TA)}, {ws}, s{S_TK} offen sc1"
        tick = []
        if pace:
            a(f"v_lshrrev_b32 {vr(TA)}, 2, {vr(V_L16)}")
            a(f"v_mov_b32 {vr(TA + 1)}, s{S_T3}")
            tick = [f"s_mov_b64 exec, {sr(S_TWO,2)}", f"buffer_store_dword {vr(TA + 1)}, {vr(TA)}, {ws}, s{S_TKH} offen", "s_mov_b64 exec, -1"]
        later = poll_issue(a, tag + "_h1", issue1, H1[:n1], max(0, P["d1"][w] - (20 if pace else 0)), P["g1"], work, tick,
                           [(t, probe) for t in pace])
        a(f"WAITL {selrd}")
        use1(H1[0], len(later))
        a(f"s_cbranch_vccnz {tag}_h1_miss")
        a(f"{tag}_h1_got:")

        def miss1(tag=tag, n1=n1, issue1=issue1, use1=use1):
            a(f"{tag}_h1_miss:")
            if P.get("count"):
                a("s_add_u32 s100, s100, 1")
            b = H1[n1 - 1]
            retry(a, tag + "_h1", issue1, b, CT, P["rdepth"], P["rgap"], n1 - 1 if not P["pace"] else 0, P.get("count") and "s_add_u32 s100, s100, 0x100")
            use1(b, None)
            a(f"s_branch {tag}_h1_got")
        cold.append(miss1)
        a(f"buffer_store_dword {vr(RED)}, {vr(V_MS)}, {ws}, s{S_RMO} offen {st}")
        stamp(a, "h1")
        if pace:
            pos = [k for k, e in enumerate(later) if e == probe]
            for k in pos:
                a(f"s_waitcnt vmcnt({len(later) - k})")
                a(f"v_cmp_gt_u32 vcc, s{S_T3}, {vr(TA + 2)} ; nocheck")
                a(f"s_cbranch_vccz {tag}_paced")
                if P.get("count"):
                    a("s_add_u32 s98, s98, 1")
            for k in range(2):
                a(probe)
                a.nops(P["pgap"])
            a(f"{tag}_pace:")
            a(probe)
            a("s_waitcnt vmcnt(2)")
            a(f"v_cmp_gt_u32 vcc, s{S_T3}, {vr(TA + 2)} ; nocheck")
            a(f"s_cbranch_vccz {tag}_paced")
            if P.get("count"):
                a("s_add_u32 s98, s98, 0x100")
            timeout(a, f"{tag}_pace")
            a(f"{tag}_paced:")

        def issue2(b):
            for i in range(2):
                a(f"buffer_load_dwordx4 {vr(b + 4 * i, 4)}, {vr(V_TD)}, {ws}, s{S_RML} offen offset:{i * 16 * SEG[0]} sc1")

        def use2(b, left):
            for i in range(2):
                if left is not None:
                    a(f"s_waitcnt vmcnt({left + 1 - i})")
                a(f"ds_write_b128 {vr(V_MW)}, {vr(b + 4 * i, 4)} offset:{L_MEM + i * 1024} ; nocheck")
            if left is not None:
                stamp(a, "h2a")
                check(a, b, CT)
        work = [f"s_xor_b32 s{S_RPC}, s{S_RPC}, 0x80000", f"s_xor_b32 s{S_RMO}, s{S_RMO}, 0x4000",
                f"s_add_u32 s{S_KV}, s{S_KV}, 0x8000", f"s_add_u32 s{S_S}, s{S_S}, 1", f"s_mov_b32 s{S_T1}, s{S_RPL}", f"s_xor_b32 s{S_RPL}, s{S_RPL}, 0x80000",
                f"s_add_u32 s{S_T3}, s{S_S}, 1", f"s_add_u32 s{S_T2}, s{S_KV}, 0x8000", f"s_min_u32 s{S_T3}, s{S_T3}, 63",
                f"s_bitcmp1_b64 {sr(S_KVM,2)}, s{S_T3}\ns_cbranch_scc0 {tag}_kv\n{tag}_kv_ok:"]
        cold.append(lambda tag=tag: (a(f"{tag}_kv:"), kv_poll(a, tag + "_kv", S_T3, CT)))
        n2 = P["n2"][w]
        H2 = (H2B, VXF) if n2 == 2 else (VXF,)
        poll_issue(a, tag + "_h2", issue2, H2, P["d2"][w], P["g2"], work)
        use2(H2[0], 2 * (n2 - 1))
        a(f"s_cbranch_vccnz {tag}_h2_miss")
        a(f"{tag}_h2_got:")

        def miss2(tag=tag, n2=n2, H2=H2, issue2=issue2, use2=use2):
            a(f"{tag}_h2_miss:")
            if P.get("count"):
                a("s_add_u32 s100, s100, 0x10000")
            b = H2[-1]
            retry(a, tag + "_h2", issue2, b, CT, P["rdepth"], P["rgap"], n2 - 1, P.get("count") and "s_add_u32 s100, s100, 0x1000000")
            use2(b, None)
            a(f"s_branch {tag}_h2_got")
        cold.append(miss2)
        stamp(a, "h2")
        if P["rein_end"]:
            for x in rein[:P["rein_end"]]:
                a(x)
        stamp(a, "pub")
        if P.get("series"):
            a("s_waitcnt lgkmcnt(0)")
            a(f"s_lshl_b32 s38, s2, 2")
            a(f"s_add_u32 s38, s38, {w}")
            a("s_lshl_b32 s38, s38, 11")
            a(f"s_lshl_b32 s37, s{S_S}, 5")
            a("s_add_u32 s38, s38, s37")
            a(f"s_add_u32 s38, s38, {hex(TRACE + 0x100000 - 32)}")
            for i in range(7):
                a(f"v_mov_b32 {vr(MEM + 16 + i)}, s{88 + 2 * i}")
            a(f"v_mov_b32 {vr(MEM + 23)}, s{S_TO}")
            if P.get("count"):
                a("s_mov_b32 s100, 0")
                a("s_mov_b32 s98, 0")
            a("s_mov_b64 exec, 1")
            a(f"buffer_store_dwordx4 {vr(MEM + 16, 4)}, off, {ws}, s38")
            a(f"buffer_store_dwordx4 {vr(MEM + 20, 4)}, off, {ws}, s38 offset:16")
            a("s_mov_b64 exec, -1")
        a(f"s_xor_b32 s{S_RML}, s{S_RML}, 0x4000")
        a(f"s_cmp_lt_u32 s{S_S}, {P.get('steps', 63)}")
        a(f"s_cbranch_scc1 {name}")
        a(f"s_branch {name}_last")
    for f in cold:
        f()
    a(f"{name}_last:")
    a("s_waitcnt lgkmcnt(0)")
    a("s_barrier")
    mark(a, 3, QA)
    for x in memrd:
        a(x)
    publish_kvm(a)
    a(f"s_add_u32 s{S_KMO}, s{S_KV}, {hex(KM)}")
    a(f"v_mov_b64 {vr(KA + 4, 2)}, 0")
    a(f"v_mov_b64 {vr(KA + 6, 2)}, 0")
    for x in ref1:
        a(x)
    for kk in (0, 1, 4, 5, 6, 7, 2, 3):
        a(f"WAITL {memrd[kk] if kk not in (2, 3) else ref1[4 * (kk - 2) + 3]}")
        for x in kmf[2 * kk:2 * kk + 2]:
            a(x)
    vm6 = vmf(range(6))
    weave(a, vm6, {0: ref2[:2], 1: ref2[2:4], 2: ref2[4:6], 3: ref2[6:] + kp[:1], 4: kp[1:3], 5: kp[3:5], 6: kp[5:], 7: [kwrite, kown[0]], 8: kown[1:]})
    a(f"WAITL {ref2[7]}")
    for x in vmf([6, 7]):
        a(x)
    a("s_waitcnt lgkmcnt(0)")
    a(kvm_stores()[1])
    for x in vp:
        a(x)
    a(kvm_stores()[0])
    mark(a, 4, QA)
    for i in range(6):
        mark(a, 8 + i, QA, 28 + i)
    mark(a, 14, QA, S_TO)
    if TRACE_ON[0] == 1:
        a("s_memtime s[36:37]")
        a("s_waitcnt lgkmcnt(0)")
        a("s_sub_u32 s36, s36, s34")
        mark(a, 15, QA, 36)
    a("s_branch L_exit")


def recurrence(a, P):
    SEG[0] = P["seg"]
    a("L_recur:")
    a(f"s_lshr_b32 s{S_H}, s2, 3")
    mark(a, 0, 100)
    for i in range(8):
        if TRACE_ON[0] == 1:
            a(f"s_mov_b32 s{28 + i}, 0")
    if P.get("r_exit"):
        a("s_branch L_exit")
    lane_ids(a)
    setup_staging(a)

    def meanwhile():
        setup(a)
        init_handoffs(a)
        srd(a, SRD_B, P_MEM0, 8 * 1024)
        a(f"v_lshrrev_b32 v100, 4, {vr(V_SPW)}")
        a("v_bfe_u32 v101, v100, 2, 2")
        a("v_and_b32 v102, 1, v100")
        a("v_lshl_add_u32 v101, v101, 1, v102")
        a("v_bfe_u32 v102, v100, 1, 1")
        a("v_lshrrev_b32 v100, 4, v100")
        a("v_lshl_add_u32 v100, v100, 1, v102")
        a("v_lshlrev_b32 v100, 4, v100")
        a("v_lshl_add_u32 v100, v101, 10, v100")
        for i in range(2):
            a(f"buffer_load_dwordx4 {vr(QA + 4 * i, 4)}, v100, {sr(SRD_B,4)}, 0 offen offset:{i * 512}")

    def ask_arrival():
        a(f"s_mov_b32 s{S_S}, 0")
        a(f"s_lshl_b32 s{S_KV}, s{S_H}, 21")
        a(f"s_mov_b32 s{S_KMO}, {hex(OOB)}")
        a(f"s_lshl_b32 s{S_FKO}, s{S_H}, 10")
        a(f"s_lshl_b32 s{S_T0}, s{S_W}, 8")
        a(f"s_add_u32 s{S_FKO}, s{S_FKO}, s{S_T0}")
        a(f"s_add_u32 s{S_FKO}, s{S_FKO}, {hex(FKV)}")
        a(f"buffer_load_dword v100, off, {sr(SRD_C,4)}, 0 sc1")

    def ask_flags():
        a(f"v_readfirstlane_b32 s{S_T0}, v100")
        a(f"s_cmp_ge_u32 s{S_T0}, 256")
        a("s_cbranch_scc1 L_rarr")
        wait_all_arrived(a, 100)
        a("L_rarr:")
        a(f"buffer_load_dword v100, off, {sr(SRD_C,4)}, 0 offset:128 sc1")
        a(f"v_lshrrev_b32 v101, 2, {vr(V_L16)}")
        a(f"buffer_load_dword v102, v101, {sr(SRD_WS,4)}, s{S_FKO} offen sc1")

    def ask_keys():
        a(f"v_cmp_eq_u32 {sr(S_KVM,2)}, 1, v102")
        a(f"s_bitcmp1_b64 {sr(S_KVM,2)}, s{S_S}")
        a("s_cbranch_scc1 L_kv0_ok")
        kv_poll(a, "L_kv0", S_S, 101)
        a("L_kv0_ok:")
        a(f"s_mov_b32 s{S_T3}, 1")
        a(f"s_bitcmp1_b64 {sr(S_KVM,2)}, s{S_T3}")
        a("s_cbranch_scc1 L_kv1_ok")
        kv_poll(a, "L_kv1", S_T3, 101)
        a("L_kv1_ok:")
        for T in range(2):
            a(f"buffer_load_dwordx4 {vr(KXF + 4 * T, 4)}, {vr(V_VX)}, {sr(SRD_WS,4)}, s{S_KV} offen offset:{T * 256} sc1")

    load_weights(a, meanwhile, 9, {P["ask_at"]: ask_arrival, P["ask_at"] + 8: ask_flags, 31: ask_keys if not P.get('f_none') else (lambda: (mark(a, 1, 104), a('s_branch L_exit')))}, P['w_order'], P['w_depth'])
    for i in range(2):
        a(f"ds_write_b128 {vr(V_SPW)}, {vr(QA + 4 * i, 4)} offset:{L_MEM + i * 4096}")
    mark(a, 1, 104)
    a(f"v_readfirstlane_b32 s{S_T4}, v100")
    a(f"s_mov_b32 s{S_ONE}, 0x3f803f80")
    a(f"s_mov_b32 s{S_ONE + 1}, 0x3f803f80")
    a(f"s_mov_b32 s{S_CC}, {C_EXP}")
    a(f"s_mov_b32 s{S_CC + 1}, {C_EXP}")
    a(f"s_mul_i32 s{S_RML}, s{S_W}, {32 * SEG[0]}")
    a(f"s_add_u32 s{S_RML}, s{S_RML}, {hex(RM + 0x4000)}")
    a(f"s_and_b32 s{S_KVM}, s{S_KVM}, {hex((1 << P['kv_again']) - 1)}")
    a(f"s_mov_b32 s{S_KVM + 1}, 0")
    a("s_waitcnt lgkmcnt(0)")
    wl_chunk(a, ST, 0)
    wl_chunk(a, ST + 16, 1)
    for j in range(12):
        a(f"v_mov_b64 {vr(QA + 2 * j, 2)}, 0")
    a(f"v_mov_b64 {vr(TMP,2)}, -1")
    a(f"v_mov_b64 {vr(TMP + 2, 2)}, -1")
    a(f"s_xor_b32 s{S_T1}, s{S_RPL}, 0x80000")
    a(f"s_add_u32 s{S_T2}, s{S_KV}, 0x8000")
    a("s_waitcnt vmcnt(0) lgkmcnt(0)")
    mark(a, 2, 100)
    if TRACE_ON[0] == 1:
        a("s_memtime s[34:35]")
        for i in range(7):
            a(f"s_mov_b32 s{88 + 2 * i}, 0")
    a(f"s_bcnt1_i32_b32 s{S_T4}, s{S_T4}")
    a(f"s_cmp_eq_u32 s{S_T4}, 1")
    if P.get("force_slow"):
        a("s_branch L_rslow")
    a("s_cbranch_scc0 L_rslow")
    step_loop(a, "L_rfast", "", P)
    step_loop(a, "L_rslow", "sc1", P)
```

```python
import sys
from asmlib import Asm, vr, ar, sr
from common import *
from follower import follower
from recur import *

DEFAULT = dict(d1=(140, 180, 240, 300), n1=(2,) * 4, g1=178, d2=(220, 180, 220, 180), n2=(2,) * 4, g2=178, rdepth=2, rgap=60, pkq=0, pkv=1, pko=0,
               mem_at=(0, 1, 3, 4, 5, 6), ref1_at=(7, 8, 19, 20, 10, 11, 21, 22), pub_at=(-1, 2, 12, 15, None, 9),
               rein_end=0, pace=(), pgap=40, seg=64, far_sleep=2, spec_km=0, far_op='atomic', last_wait=0, near_sleep=0, prompt=1, f_slots=3, f3_window=0, busy_b3=(0, 0), busy_h=(0, 0), busy_top=0, kz_at=19, q_split=4, k_split=0, v_split=4,
               vp_at=(48, 49), l1_at=(), k_order=(0, 1, 4, 5, 6, 7, 2, 3), v_order=(0, 1, 2, 3, 6, 7, 4, 5),
               nop_at=((16, 1), (17, 1), (32, 0)),
               qp_at=(16, 17, 18, 19, 20, 18, 20, 20, 21, 22, 23, 24, 25, 26, 27, 28, 29),
               sx_at=16, ref2_at=(30, 31, 33, 34, 32, 35, 38, 39), kld_at=(36, 43), sp_at=36,
               kp_at=(27, 28, 30, 33, 34, 35, 37), cst_at=(44, 45, 46, 47, 48, 49), bar_at=6, kv_again=7, ask_at=14,
               w_order='oqkv', w_depth=0, post_per=1, wsplit=1, km_back=3, ref3_pre=1, ref3_step=1)


def build(P, verbose=False, check=True):
    a = Asm()
    TRACE_ON[0] = int(P.get('trace', 0))
    TRACE_ON[1] = P.get('f3marks')
    a("s_cmp_ge_u32 s2, 256")
    a("s_cbranch_scc1 L_exit")
    a("s_load_dwordx16 s[40:55], s[0:1], 0")
    a("s_load_dwordx8 s[56:63], s[0:1], 64")
    a("s_load_dwordx4 s[64:67], s[0:1], 96")
    a("s_load_dwordx2 s[68:69], s[0:1], 112")
    a("v_lshrrev_b32 v1, 6, v0")
    a(f"v_readfirstlane_b32 s{S_W}, v1")
    a(f"s_mov_b32 s{S_TO}, 0")
    a("s_waitcnt lgkmcnt(0)")
    srd(a, SRD_WS, P_WS, WS_BYTES)
    a(f"s_and_b32 s{S_T0}, s2, 7")
    a(f"s_cmp_lg_u32 s{S_T0}, 0")
    a("s_cbranch_scc1 L_follower")
    recurrence(a, P)
    follower(a, P)
    a("L_exit:")
    a("s_endpgm")
    if P.get("drop"):
        import re
        inside, keep = False, []
        for k, x in a.items:
            if k == "label" and x == "L_rfast":
                inside = True
            if k == "label" and x == "L_rfast_w0":
                inside = False
            if inside and k == "ins" and any(re.search(p, x.text) for p in P["drop"]):
                continue
            keep.append((k, x))
        a.items = keep
    if P.get("fdrop"):
        import re
        inside, keep = False, []
        for k, x in a.items:
            if k == "label" and x == "L_f3":
                inside = True
            if inside and k == "ins" and any(re.search(p, x.text) for p in P["fdrop"]):
                continue
            keep.append((k, x))
        a.items = keep
    n = a.pad_hazards(verbose)
    probs = a.check_waits() if check else []
    for p in probs:
        print("WAIT:", p)
    if P.get("strict") and any("counted lgkm" not in p for p in probs):
        raise ValueError("wait check failed")
    if P.get("align", 1):
        a.align8()
    print(f"instructions: {a.count()}, hazard pad states: {n}")
    ref = open(f"cdna_kernels/{NAME}.s.ref").read().split("\n")
    head = [l for l in ref if l.startswith(";") and "@launch" not in l and not l.startswith("    ")]
    out = "\n".join(head) + "\n; @launch grid=(256,1,1) block=(256,1,1) lds=163840\n"
    out += f'.amdgcn_target "amdgcn-amd-amdhsa--gfx950"\n.text\n.globl {NAME}_kernel\n.p2align 8\n.type {NAME}_kernel,@function\n{NAME}_kernel:\n'
    out += a.text()
    out += f'''.section .rodata,"a"
.p2align 6
.amdhsa_kernel {NAME}_kernel
  .amdhsa_next_free_vgpr 512
  .amdhsa_next_free_sgpr 102
  .amdhsa_accum_offset 256
  .amdhsa_group_segment_fixed_size 0
  .amdhsa_kernarg_size 120
  .amdhsa_user_sgpr_count 2
  .amdhsa_user_sgpr_kernarg_segment_ptr 1
  .amdhsa_system_sgpr_workgroup_id_x 1
  .amdhsa_float_denorm_mode_32 3
.end_amdhsa_kernel
'''
    return out


if __name__ == "__main__":
    P = dict(DEFAULT)
    path = f"cdna_kernels/{NAME}.s"
    verbose = False
    for arg in sys.argv[1:]:
        if arg == "-v":
            verbose = True
        elif arg.startswith("out="):
            path = arg[4:]
        else:
            k, v = arg.split("=")
            P[k] = eval(v)
    open(path, "w").write(build(P, verbose))
```

```python
import re


def vr(i, n=1):
    return f"v{i}" if n == 1 else f"v[{i}:{i+n-1}]"


def ar(i, n=1):
    return f"a{i}" if n == 1 else f"a[{i}:{i+n-1}]"


def sr(i, n=1):
    return f"s{i}" if n == 1 else f"s[{i}:{i+n-1}]"


_REG = re.compile(r"^(-|\|)?(?:abs\()?([vas])(?:(\d+)|\[(\d+):(\d+)\])\)?\|?$")
TRANS = ("v_exp_f32", "v_log_f32", "v_rcp_f32", "v_rsq_f32", "v_sqrt_f32", "v_sin_f32", "v_cos_f32")


def regs_of(tok):
    tok = tok.strip()
    if tok == "vcc":
        return {("s", 106), ("s", 107)}
    if tok == "exec":
        return {("s", 126), ("s", 127)}
    if tok == "m0":
        return {("s", 124)}
    m = _REG.match(tok)
    if not m:
        return set()
    k = m.group(2)
    if m.group(3) is not None:
        return {(k, int(m.group(3)))}
    return {(k, i) for i in range(int(m.group(4)), int(m.group(5)) + 1)}


class Ins:
    __slots__ = ("text", "mn", "ops", "mods", "w", "r", "kind", "note", "mf")

    def __init__(self, text):
        self.text = text
        body, _, note = text.partition(";")
        self.note = note.strip()
        body = body.strip()
        mn, _, rest = body.partition(" ")
        self.mn = mn
        parts = [p.strip() for p in re.split(r",(?![^\[]*\])", rest)] if rest.strip() else []
        mods = ""
        if parts:
            last = parts[-1].split(None, 1)
            if len(last) == 2 and not mn.startswith("s_waitcnt"):
                parts[-1], mods = last
        self.ops, self.mods = parts, mods
        self.w, self.r, self.mf = set(), set(), None
        self._classify()

    def _classify(self):
        mn, o = self.mn, self.ops
        R = [regs_of(x) for x in o]
        allr = lambda xs: set().union(*xs) if xs else set()
        if mn.startswith("v_mfma") or mn.startswith("v_smfmac"):
            self.kind = "mfma"
            passes = 8 if "32x32" in mn else 4
            if mn.startswith("v_smfmac"):
                self.mf = dict(d=R[0], ab=R[1] | R[2] | R[3], c=R[0], passes=passes)
            else:
                self.mf = dict(d=R[0], ab=R[1] | R[2], c=R[3], passes=passes)
            self.w = R[0]
            self.r = self.mf["ab"] | self.mf["c"]
        elif mn.startswith("v_"):
            self.kind = "valu"
            self.w = set(R[0])
            self.r = allr(R[1:])
            if mn.startswith("v_permlane") and "swap" in mn:
                self.w = R[0] | R[1]
                self.r = R[0] | R[1]
            if mn.startswith(("v_fmac", "v_dot2c", "v_writelane", "v_pk_fmac")) or "_dpp" in mn:
                self.r |= R[0]
            if mn.startswith(("v_add_co", "v_sub_co", "v_addc_co", "v_subb_co")):
                self.w |= R[1]
                self.r = allr(R[2:])
            if mn.startswith("v_cmpx"):
                self.w |= regs_of("exec")
        elif mn.startswith("ds_"):
            self.kind = "ds"
            if mn.startswith(("ds_read", "ds_bpermute", "ds_permute", "ds_swizzle")):
                self.w = R[0]
                self.r = allr(R[1:])
            else:
                self.r = allr(R)
        elif mn.startswith(("buffer_", "global_")):
            self.kind = "vmem"
            lds = " lds" in (" " + self.mods) or "_lds_" in mn
            if mn.startswith(("buffer_wbl2", "buffer_inv")):
                pass
            elif lds:
                self.r = allr(R) | regs_of("m0")
            elif "_load" in mn:
                self.w = R[0]
                self.r = allr(R[1:])
            elif "atomic" in mn and "sc0" in self.mods:
                self.w = R[0]
                self.r = allr(R) if mn.startswith("buffer") else allr(R[1:])
            else:
                self.r = allr(R)
        elif mn.startswith(("s_load", "s_memtime", "s_memrealtime", "s_buffer_load")):
            self.kind = "smem"
            self.w = R[0]
            self.r = allr(R[1:])
        elif mn.startswith("s_"):
            self.kind = "salu"
            if mn.startswith(("s_cmp", "s_bitcmp", "s_cbranch", "s_branch", "s_waitcnt", "s_barrier", "s_nop",
                              "s_setprio", "s_sleep", "s_endpgm")):
                self.r = allr(R)
            else:
                self.w = set(R[0]) if R else set()
                self.r = allr(R[1:])
                if "saveexec" in mn:
                    self.w |= regs_of("exec")
        else:
            raise ValueError("unknown instruction: " + self.text)

    def states(self):
        return int(self.ops[0], 0) + 1 if self.mn == "s_nop" else 1

    def store_data(self):
        if self.kind == "vmem" and re.search(r"store_dwordx[34]", self.mn):
            return regs_of(self.ops[0] if self.mn.startswith("buffer") else self.ops[1])
        return set()


def isv(x):
    return {r for r in x if r[0] in "va"}


def iss(x):
    return {r for r in x if r[0] == "s"}


def need(p, c):
    n = 0
    if p.kind == "valu":
        wv, ws = isv(p.w), iss(p.w)
        if c.kind == "mfma" and wv & c.r:
            n = max(n, 2)
        if c.kind == "valu":
            if wv & c.r:
                if c.mn.startswith("v_permlane") or "_dpp" in c.mn:
                    n = max(n, 2)
                if c.mn.startswith(("v_readlane", "v_readfirstlane")):
                    n = max(n, 1)
                if p.mn.startswith(TRANS) and not c.mn.startswith(TRANS):
                    n = max(n, 1)
            if p.mn.startswith("v_dot") and wv & (c.r | c.w):
                same_acc = c.mn == p.mn and not (wv & set().union(*[regs_of(x) for x in c.ops[1:3]]))
                if not same_acc:
                    n = max(n, 3)
            if ws & c.r:
                n = max(n, 4 if c.mn.startswith(("v_readlane", "v_writelane")) else 2)
        if p.mn.startswith("v_dot") and c.kind in ("vmem", "ds", "mfma") and wv & c.r:
            n = max(n, 3)
        if c.kind == "vmem" and ws & c.r:
            n = max(n, 5)
        if c.kind == "salu" and ws & c.r and not c.mn.startswith("s_cbranch"):
            n = max(n, 1)
        if regs_of("exec") & p.w and c.kind in ("mfma", "valu"):
            n = max(n, 5)
    if p.kind == "mfma":
        d, ps = p.mf["d"], p.mf["passes"]
        full = 8 if ps == 4 else 12
        if c.kind == "mfma":
            if d & c.mf["ab"]:
                n = max(n, full)
            if d & c.mf["c"] and not (d == c.mf["c"] and p.mn == c.mn):
                n = max(n, full - 2)
            if d & c.mf["d"] and not (d & c.mf["c"]):
                n = max(n, full - 2 if d != c.mf["d"] or ps != c.mf["passes"] else 0)
        elif c.kind in ("valu", "vmem", "ds"):
            if d & (c.r | c.w):
                n = max(n, full)
            if c.kind == "valu" and p.mf["c"] & c.w:
                n = max(n, 3 if ps == 4 else 7)
    if p.kind == "salu" and ("s", 124) in p.w and c.kind == "vmem" and ("s", 124) in c.r:
        n = max(n, 1)
    sd = p.store_data()
    if sd and sd & c.w:
        n = max(n, 2 if c.kind in ("valu", "mfma") else 1)
    return n


class Asm:
    def __init__(self):
        self.items = []
        self._uid = 0
        self.inject, self.ordinal = {}, 0
        self.idle = None
        self.skip = set()

    def __call__(self, text):
        for line in text.split("\n"):
            s = line.strip()
            if not s or s in self.skip:
                continue
            if s.startswith(("WAITL ", "WAITV ")):
                self._wait_for(s[:5], s[6:].strip())
            elif s.startswith(";") or s.startswith("."):
                self.items.append(("raw", s))
            elif re.match(r"^[\w.$]+:$", s):
                self.items.append(("label", s[:-1]))
            else:
                for x in self.inject.pop(self.ordinal, ()):
                    self.items.append(("ins", Ins(x)))
                self.ordinal += 1
                self.items.append(("ins", Ins(s)))

    def _wait_for(self, kind, text):
        cls = "ds" if kind == "WAITL" else "vmem"
        if text in self.skip:
            return
        name, cap = ("lgkmcnt", 15) if cls == "ds" else ("vmcnt", 63)
        n, seen = 0, []
        for k, x in reversed(self.items):
            if k == "raw" and x == "; " + text:
                break
            if k != "ins":
                continue
            if x.text.strip() == text:
                break
            n += x.kind == cls
            m = re.search(name + r"\((\d+)\)", x.text) if x.mn == "s_waitcnt" else None
            if m:
                seen.append((n, int(m.group(1))))
        else:
            raise ValueError("no such instruction: " + text)
        if not any(cnt <= n - after for after, cnt in seen):
            self(f"s_waitcnt {name}({min(n, cap)})")

    def anchor(self, name):
        self.items.append(("raw", "; " + name))

    def uid(self, p="L"):
        self._uid += 1
        return f"{p}_{self._uid}"

    def nops(self, cycles):
        if self.idle == "sleep" and cycles >= 72:
            self(f"s_sleep {(cycles - 8) // 64}")
            cycles -= 8 + (cycles - 8) // 64 * 64
        while self.idle not in (None, "sleep") and cycles >= 16:
            self(self.idle)
            cycles -= 16
        n = cycles // 4
        while n > 0:
            k = min(n, 16)
            self(f"s_nop {k-1}")
            n -= k

    def _cfg(self):
        idx = [i for i, it in enumerate(self.items) if it[0] == "ins"]
        nxt = {}
        pos = {}
        k = len(idx)
        for i in range(len(self.items) - 1, -1, -1):
            if self.items[i][0] == "ins":
                k -= 1
            pos[i] = k
        labels = {it[1]: pos[i] for i, it in enumerate(self.items) if it[0] == "label"}
        ins = [self.items[i][1] for i in idx]
        for j, x in enumerate(ins):
            if x.mn == "s_endpgm":
                nxt[j] = []
            elif x.mn == "s_branch":
                nxt[j] = [labels[x.ops[0]]]
            elif x.mn.startswith("s_cbranch"):
                nxt[j] = [j + 1, labels[x.ops[0]]]
            else:
                nxt[j] = [j + 1]
            nxt[j] = [t for t in nxt[j] if t < len(ins)]
        return idx, ins, nxt

    def pad_hazards(self, verbose=False):
        total = 0
        for _ in range(50):
            idx, ins, nxt = self._cfg()
            fix = {}
            for j, p in enumerate(ins):
                if p.kind not in ("valu", "mfma", "salu", "vmem"):
                    continue
                if p.kind == "salu" and ("s", 124) not in p.w:
                    continue
                if p.kind == "vmem" and not p.store_data():
                    continue
                lim = 12 if p.kind == "mfma" else 5
                stack = [(t, 0) for t in nxt[j]]
                seen = {}
                while stack:
                    t, d = stack.pop()
                    if d >= lim or seen.get(t, 99) <= d:
                        continue
                    seen[t] = d
                    c = ins[t]
                    n = need(p, c)
                    if n > d:
                        if fix.get(t, (0,))[0] < n - d:
                            fix[t] = (n - d, p.text)
                    for u in nxt[t]:
                        stack.append((u, d + c.states()))
            if not fix:
                return total
            first = min(fix)
            done = 0
            for t in sorted(fix, reverse=True):
                if any(0 < t - u <= 12 for u in fix):
                    continue
                n, why = fix[t]
                if verbose:
                    print(f"pad {n} before [{ins[t].text}] after [{why}]")
                self.items.insert(idx[t], ("ins", Ins(f"s_nop {n-1}")))
                total += n
                done += 1
            assert done
        raise RuntimeError("hazard padding did not converge")

    def check_waits(self, entries=(0,), max_visits=3):
        idx, ins, nxt = self._cfg()
        problems = set()
        visits = {}
        stack = [(e, (), ()) for e in entries]
        while stack:
            j, vm, lg = stack.pop()
            while True:
                key = (j, vm, lg)
                if key in visits:
                    break
                cnt = visits.get(j, 0)
                if cnt >= max_visits:
                    break
                visits[j] = cnt + 1
                visits[key] = 1
                x = ins[j]
                if "nocheck" not in x.note:
                    touched = x.r | x.w
                    for q in vm + lg:
                        pend = ins[q].w
                        if pend & touched and not (x.kind == ins[q].kind and not (pend & x.r) and x.kind != "smem"):
                            problems.add(f"[{x.text}] touches pending result of [{ins[q].text}]")
                    if x.mn == "s_barrier":
                        for q in lg:
                            if ins[q].kind == "ds" and not ins[q].w:
                                problems.add(f"barrier #{j} with outstanding [{ins[q].text}]")
                if x.mn == "s_waitcnt":
                    t = x.text.split(";")[0]
                    m = re.search(r"vmcnt\((\d+)\)", t)
                    if m:
                        n = int(m.group(1))
                        vm = vm[len(vm) - n:] if n and len(vm) > n else (vm if n else ())
                    m = re.search(r"lgkmcnt\((\d+)\)", t)
                    if m:
                        n = int(m.group(1))
                        if n and any(ins[q].kind == "smem" for q in lg):
                            problems.add(f"counted lgkm wait with smem in flight: #{j} {x.text}")
                        lg = lg[len(lg) - n:] if n and len(lg) > n else (lg if n else ())
                elif x.kind == "vmem" and not x.mn.startswith(("buffer_wbl2", "buffer_inv")):
                    vm = (vm + (j,))[-64:]
                elif x.kind in ("ds", "smem"):
                    lg = lg + (j,)
                    if len(lg) > 40:
                        lg = lg[-40:]
                s = nxt[j]
                if not s:
                    break
                for t in s[1:]:
                    stack.append((t, vm, lg))
                j = s[0]
        return sorted(problems)

    def align8(self):
        import subprocess, tempfile, os
        with tempfile.TemporaryDirectory() as d:
            open(d + "/a.s", "w").write('.amdgcn_target "amdgcn-amd-amdhsa--gfx950"\n.text\n' + self.text())
            subprocess.run(["clang", "-x", "assembler", "-target", "amdgcn-amd-amdhsa", "-mcpu=gfx950", "-c",
                            d + "/a.s", "-o", d + "/a.o"], check=True)
            dis = subprocess.run(["llvm-objdump", "-d", "--mcpu=gfx950", d + "/a.o"], check=True,
                                 capture_output=True, text=True).stdout
        sizes = [4 * len(m.group(1).split()) for m in re.finditer(r"// [0-9A-F]+:((?: [0-9A-F]{8})+)", dis)]
        idx = [i for i, it in enumerate(self.items) if it[0] == "ins"]
        assert len(sizes) == len(idx), (len(sizes), len(idx))
        WIDE = ("v_add_f32", "v_sub_f32", "v_mul_f32", "v_max_f32", "v_max_u32", "v_exp_f32", "v_rcp_f32", "v_mov_b32", "v_mov_b64",
                "v_add_u32", "v_lshlrev_b32", "v_lshrrev_b32", "v_and_b32", "v_xor_b32", "v_cmp_eq_u32", "v_cmp_u_f32", "v_cmp_ne_u32")
        INF = 1 << 30
        best = [(0, None), (INF, None)]
        back = []
        for i, sz in zip(idx, sizes):
            x = self.items[i][1]
            opts = [(sz, 0)]
            if sz == 4 and x.mn in WIDE:
                opts.append((8, 1))
            if x.mn == "s_nop" and int(x.ops[0], 0) >= 1:
                opts.append((8, 2))
            nb, bk = [INF, INF], [None, None]
            for par in (0, 1):
                if best[par][0] >= INF:
                    continue
                for size, how in opts:
                    c = best[par][0] + (4 if size >= 8 and par and how != 2 else 0) + (1 if how else 0)
                    np_ = (par + size // 4) & 1
                    if c < nb[np_]:
                        nb[np_], bk[np_] = c, (par, how)
            best = [(nb[0], None), (nb[1], None)]
            back.append(bk)
        par = 0 if best[0][0] <= best[1][0] else 1
        total = best[par][0]
        for i, bk in zip(reversed(idx), reversed(back)):
            par, how = bk[par]
            x = self.items[i][1]
            if how == 1:
                self.items[i] = ("ins", Ins(x.text.replace(x.mn, x.mn + "_e64", 1)))
            elif how == 2:
                n = int(x.ops[0], 0)
                self.items[i:i + 1] = [("ins", Ins("s_nop 0")), ("ins", Ins(f"s_nop {n - 1}"))]
        return total

    def text(self):
        out = []
        for k, x in self.items:
            if k == "label":
                out.append(x + ":")
            elif k == "raw":
                out.append(x)
            else:
                out.append("  " + x.text.split(";")[0].rstrip())
        return "\n".join(out) + "\n"

    def count(self):
        return sum(1 for k, _ in self.items if k == "ins")
```

```python
from asmlib import vr, ar, sr
from common import *

XB, XSTR = 0, 33280
GB = 0x10400
STG = 0x10C00
S_SEG, S_NSEG, S_I, S_XCUR, S_W1K, S_OFF, S_FFN, S_XN = 28, 29, 30, 31, 32, 33, 34, 35
S_MASK = 70

V_LANE, V_L16, V_L16W, V_DMA, V_TR, V_XF, V_XC, V_GU0, V_GU1, V_TRG, V_T0, V_T1, V_T2, V_T3, V_FL, V_G = range(1, 17)
V_XG, V_GC, V_KM, V_VM, V_RD, V_OUT, V_KP = range(17, 24)
XF = 24
GW = 96
T0, T1 = 64, 80
PK = 40
SENT = 56


def lane_setup(a):
    l = vr(V_LANE)
    a(f"v_and_b32 {l}, 63, v0")
    a(f"v_lshlrev_b32 {vr(V_L16)}, 4, {l}")
    a(f"s_lshl_b32 s{S_W1K}, s{S_W}, 10")
    a(f"v_add_u32 {vr(V_L16W)}, s{S_W1K}, {vr(V_L16)}")
    t0, t1, t2, t3 = (vr(x) for x in (V_T0, V_T1, V_T2, V_T3))
    a(f"v_lshrrev_b32 {t0}, 4, {l}")
    a(f"v_and_b32 {t1}, 15, {l}")
    a(f"v_lshlrev_b32 {t2}, 2, {t0}")
    a(f"v_xor_b32 {t1}, {t1}, {t2}")
    a(f"v_lshlrev_b32 {t1}, 4, {t1}")
    a(f"s_lshl_b32 s{S_T0}, s{S_W}, 2")
    a(f"v_add_u32 {t0}, s{S_T0}, {t0}")
    a(f"v_lshl_add_u32 {vr(V_DMA)}, {t0}, 13, {t1}")
    a(f"v_bfe_u32 {t0}, {l}, 2, 2")
    a(f"v_bfe_u32 {t1}, {l}, 4, 1")
    a(f"v_bfe_u32 {t2}, {l}, 1, 1")
    a(f"v_lshl_add_u32 {t3}, {t1}, 1, {t2}")
    a(f"v_add_u32 {t3}, s{S_T0}, {t3}")
    a(f"v_lshlrev_b32 {vr(V_TR)}, 2, {t0}")
    a(f"v_xor_b32 {t3}, {t3}, {vr(V_TR)}")
    a(f"v_lshlrev_b32 {t3}, 4, {t3}")
    a(f"v_lshrrev_b32 {vr(V_TR)}, 5, {l}")
    a(f"v_lshl_add_u32 {vr(V_TR)}, {vr(V_TR)}, 3, {t0}")
    a(f"v_lshl_add_u32 {vr(V_TR)}, {vr(V_TR)}, 8, {t3}")
    a(f"v_and_b32 {t3}, 1, {l}")
    a(f"v_lshl_add_u32 {vr(V_TR)}, {t3}, 3, {vr(V_TR)}")
    a(f"s_lshl_b32 s{S_T1}, s{S_W}, 1")
    a(f"v_add_u32 {t2}, s{S_T1}, {t2}")
    a(f"v_lshrrev_b32 {vr(V_TRG)}, 1, {t0}")
    a(f"v_lshl_add_u32 {vr(V_TRG)}, {t1}, 1, {vr(V_TRG)}")
    a(f"v_lshlrev_b32 {vr(V_TRG)}, 1, {vr(V_TRG)}")
    a(f"v_xor_b32 {t2}, {t2}, {vr(V_TRG)}")
    a(f"v_lshlrev_b32 {t2}, 4, {t2}")
    a(f"v_lshl_add_u32 {t2}, {t3}, 3, {t2}")
    a(f"v_lshl_add_u32 {t2}, {t1}, 13, {t2}")
    a(f"v_lshrrev_b32 {vr(V_TRG)}, 5, {l}")
    a(f"v_lshl_add_u32 {vr(V_TRG)}, {vr(V_TRG)}, 3, {t0}")
    a(f"v_lshl_add_u32 {vr(V_TRG)}, {vr(V_TRG)}, 7, {t2}")
    a(f"v_lshrrev_b32 {t0}, 3, {l}")
    a(f"s_lshl_b32 s{S_T1}, s{S_W}, 3")
    a(f"v_add_u32 {t0}, s{S_T1}, {t0}")
    a(f"v_mul_u32_u24 {t0}, 3584, {t0}")
    a(f"v_and_b32 {t2}, 7, {l}")
    a(f"v_lshlrev_b32 {t1}, 1, {t1}")
    a(f"v_xor_b32 {t2}, {t2}, {t1}")
    a(f"v_lshl_add_u32 {vr(V_GU0)}, {t2}, 4, {t0}")
    a(f"v_xor_b32 {t2}, 4, {t2}")
    a(f"v_lshl_add_u32 {vr(V_GU1)}, {t2}, 4, {t0}")
    a(f"v_and_b32 {t0}, 31, {l}")
    a(f"v_mul_u32_u24 {t0}, 1040, {t0}")
    a(f"v_lshrrev_b32 {t1}, 5, {l}")
    a(f"v_lshl_add_u32 {vr(V_XF)}, {t1}, 4, {t0}")
    a(f"v_bfe_u32 {t0}, {l}, 3, 1")
    a(f"v_bfe_u32 {t1}, {l}, 4, 1")
    a(f"v_and_b32 {t2}, 0x27, {l}")
    a(f"v_lshl_add_u32 {t2}, {t0}, 4, {t2}")
    a(f"v_lshl_add_u32 {t2}, {t1}, 3, {t2}")
    a(f"v_lshlrev_b32 {vr(V_KP)}, 4, {t2}")
    a(f"v_lshrrev_b32 {t0}, 3, v0")
    a(f"v_mul_u32_u24 {t0}, 1040, {t0}")
    a(f"v_and_b32 {t1}, 7, v0")
    a(f"v_lshl_add_u32 {vr(V_XG)}, {t1}, 4, {t0}")
    a(f"v_cmp_eq_u32 vcc, 0, {l}")
    a(f"v_mov_b32 {t0}, {hex(OOB)}")
    a(f"v_cndmask_b32 {vr(V_FL)}, {t0}, {l}, vcc")


def x_dma_list(s_src, s_dst):
    return [f"s_add_u32 m0, s{s_dst}, {4 * i * 1040}\ns_add_u32 s{S_T2}, s{s_src}, {4 * i * 1024}\n"
            f"buffer_load_dwordx4 {vr(V_L16W)}, {sr(SRD_C,4)}, s{S_T2} offen lds" for i in range(8)]


def x_first(a):
    a(f"s_lshl_b32 s{S_T0}, s{S_SUB}, 15")
    a(f"s_mul_i32 s{S_T1}, s{S_W}, 1040")
    for x in x_dma_list(S_T0, S_T1):
        a(x)


def issue256(a, srdreg, kk, slot):
    for i in range(4):
        a(f"s_add_u32 m0, s{S_W1K}, {slot + i * 4096}")
        a(f"s_add_u32 s{S_T0}, s{S_OFF}, {(64 * kk + 16 * i) * 8192}")
        a(f"buffer_load_dwordx4 {vr(V_DMA)}, {sr(srdreg,4)}, s{S_T0} offen lds")


def consume256(a, base, kk, slot):
    a(f"v_add_u32 {vr(V_T0)}, {slot}, {vr(V_TR)}")
    for tt in range(4):
        for jh in range(2):
            a(f"ds_read_b64_tr_b16 {ar(base + (4 * kk + tt) * 4 + 2 * jh, 2)}, {vr(V_T0)} offset:{tt * 4096 + jh * 1024}")


S_PREV, S_PFL, S_XS, S_XD, S_PQ = 70, 71, 72, 73, 74


def block_offsets(a):
    a(f"s_lshl_b32 s{S_T0}, s{S_H}, 6")
    a(f"s_add_u32 s{S_T0}, s{S_T0}, s{S_SEG}")
    a(f"s_lshl_b32 s{S_PREV}, s{S_T0}, 15")
    a(f"s_lshl_b32 s{S_PQ}, s{S_T0}, 13")
    a(f"s_add_u32 s{S_PQ}, s{S_PQ}, {hex(QX)}")
    a(f"s_lshl_b32 s{S_T0}, s{S_H}, 10")
    a(f"s_lshl_b32 s{S_T1}, s{S_W}, 8")
    a(f"s_add_u32 s{S_T0}, s{S_T0}, s{S_T1}")
    a(f"s_lshl_b32 s{S_T1}, s{S_SEG}, 2")
    a(f"s_add_u32 s{S_T0}, s{S_T0}, s{S_T1}")
    a(f"s_add_u32 s{S_PFL}, s{S_T0}, {hex(FKV)}")


def seg_loop(a, name, second_is_v, fill, finish, younger, two_variants=False):
    a(f"s_mov_b32 s{S_I}, 0")
    a(f"s_mov_b32 s{S_SEG}, s{S_SUB}")
    a(f"s_mov_b32 s{S_XCUR}, {XB}")
    for r in (S_PREV, S_PQ, S_PFL):
        a(f"s_mov_b32 s{r}, {hex(OOB)}")
    a(f"{name}:")
    a(f"s_add_u32 s{S_XS}, s{S_SEG}, 7")
    a(f"s_min_u32 s{S_XS}, s{S_XS}, 63")
    a(f"s_lshl_b32 s{S_XS}, s{S_XS}, 15")
    a(f"s_sub_u32 s{S_XN}, {XSTR}, s{S_XCUR}")
    a(f"s_mul_i32 s{S_XD}, s{S_W}, 1040")
    a(f"s_add_u32 s{S_XD}, s{S_XD}, s{S_XN}")
    a(f"v_add_u32 {vr(V_XC)}, s{S_XCUR}, {vr(V_XF)}")
    a(f"s_waitcnt vmcnt({younger})")
    a("s_barrier")
    rd = [f"ds_read_b128 {vr(XF + 4 * (t % 4), 4)}, {vr(V_XC)} offset:{t * 32}" for t in range(32)]

    def body(with_second):
        for t in range(3):
            a(rd[t])
        f = fill()
        for k, x in enumerate(x_dma_list(S_XS, S_XD)):
            f.setdefault(2 * k + 1, []).insert(0, x)
        for t in range(32):
            if t + 3 < 32:
                a(rd[t + 3])
            a(f"WAITL {rd[t]}")
            x = vr(XF + 4 * (t % 4), 4)
            c0 = "0" if t == 0 else vr(T0, 16)
            c1 = "0" if t == 0 else vr(T1, 16)
            a(f"v_mfma_f32_32x32x16_bf16 {vr(T0,16)}, {ar(4 * t, 4)}, {x}, {c0}")
            for y in f.pop(2 * t, []):
                a(y)
            if with_second:
                if second_is_v:
                    a(f"v_mfma_f32_32x32x16_bf16 {vr(T1,16)}, {x}, {ar(128 + 4 * t, 4)}, {c1}")
                else:
                    a(f"v_mfma_f32_32x32x16_bf16 {vr(T1,16)}, {ar(128 + 4 * t, 4)}, {x}, {c1}")
            for y in f.pop(2 * t + 1, []):
                a(y)
        assert not f, f

    if two_variants:
        a(f"s_cmp_eq_u32 s{S_FFN}, 0")
        a(f"s_cbranch_scc1 {name}_noffn")
        body(True)
        a(f"s_branch {name}_join")
        a(f"{name}_noffn:")
        body(False)
        a(f"{name}_join:")
    else:
        body(True)
    block_offsets(a)
    a(f"s_mov_b32 s{S_XCUR}, s{S_XN}")
    a(f"s_add_u32 s{S_SEG}, s{S_SEG}, 7")
    a(f"s_add_u32 s{S_I}, s{S_I}, 1")
    finish()
    a(f"s_cmp_lt_u32 s{S_I}, s{S_NSEG}")
    a(f"s_cbranch_scc1 {name}")


def pack(a, acc, dst):
    for j in range(8):
        a(f"v_cvt_pk_bf16_f32 {vr(dst + j)}, {vr(acc + 2 * j)}, {vr(acc + 2 * j + 1)}")


def place(f, start, items, per):
    for k, x in enumerate(items):
        f.setdefault(start + k // per, []).append(x)


def phase1a(a, meanwhile, extra, P):
    srd(a, SRD_A, P_WK, 512 * 8192)
    srd(a, SRD_B, P_WV, 512 * 8192)
    a(f"s_lshl_b32 s{S_OFF}, s{S_H}, 8")

    def after(c):
        if c == P["f1_slots"] - 1:
            arrive(a, V_T1)
            srd(a, SRD_C, P_X, 2048 * 1024)

    N1 = P["f1_slots"]
    stage(a, 16, N1,
          lambda c: issue256(a, SRD_A if c < 8 else SRD_B, c % 8, XSTR + (c % N1) * 16384),
          lambda c: consume256(a, 0 if c < 8 else 128, c % 8, XSTR + (c % N1) * 16384), after, meanwhile, extra)

    mark(a, 1, V_T0, dbg_base=6)

    ws = sr(SRD_WS, 4)
    a(f"v_mov_b64 {vr(SENT,2)}, -1")
    a(f"v_mov_b64 {vr(SENT + 2, 2)}, -1")
    a(f"s_lshr_b32 s{S_T0}, s{S_W1K}, 1")
    a(f"v_add_u32 {vr(V_T0)}, s{S_T0}, {vr(V_L16)}")
    a(f"v_mov_b32 {vr(V_T1)}, {hex(OOB)}")
    a(f"v_cmp_gt_u32 vcc, 32, {vr(V_LANE)}")
    a(f"v_cndmask_b32 {vr(V_KM)}, {vr(V_T1)}, {vr(V_T0)}, vcc")
    a(f"s_lshl_b32 s{S_T0}, s{S_W}, 12")
    a(f"v_add_u32 {vr(V_VM)}, s{S_T0}, {vr(V_L16)}")
    a(f"v_add_u32 {vr(V_RD)}, s{S_T0}, {vr(V_KP)}")
    a(f"v_mov_b32 {vr(V_G)}, 1")
    st = [f"buffer_store_dwordx4 {vr(PK + 4 * bb, 4)}, {vr(V_RD)}, {ws}, s{S_PREV} offen offset:{KX + bb * 1024} sc1" for bb in range(2)]
    st += [f"buffer_store_dwordx4 {vr(PK + 8 + 4 * bb, 4)}, {vr(V_VM)}, {ws}, s{S_PREV} offen offset:{VX + bb * 1024} sc1" for bb in range(2)]
    st += [f"s_add_u32 s{S_T3}, s{S_PREV}, {hex(KM)}\nbuffer_store_dwordx4 {vr(SENT,4)}, {vr(V_KM)}, {ws}, s{S_T3} offen sc1",
           f"buffer_store_dwordx4 {vr(SENT,4)}, {vr(V_L16W)}, {ws}, s{S_T3} offen offset:2048 sc1"]
    flag = f"s_waitcnt vmcnt(0)\nbuffer_store_dword {vr(V_G)}, {vr(V_FL)}, {ws}, s{S_PFL} offen sc1"

    def fill():
        f = {17 + 2 * k: [x] for k, x in enumerate(st)}
        f[62] = [flag]
        return f

    def finish():
        pack(a, T0, PK)
        pack(a, T1, PK + 8)
        if P["prompt"]:
            a(f"s_cmp_gt_u32 s{S_I}, {P['prompt']}")
            a("s_cbranch_scc1 L_f1a_lazy")
            for x in st + [flag]:
                a(x)
            a(f"s_mov_b32 s{S_PREV}, {hex(OOB)}")
            a(f"s_mov_b32 s{S_PFL}, {hex(OOB)}")
            if P["yield_to"]:
                srd(a, SRD_A, P_DBG, 256)
                a("L_f1a_yield:")
                a(f"buffer_load_dword {vr(V_T0)}, off, {sr(SRD_A,4)}, 0 offset:64 sc1")
                a("s_waitcnt vmcnt(0)")
                a(f"v_readfirstlane_b32 s{S_T0}, {vr(V_T0)}")
                a(f"s_cmp_ge_u32 s{S_T0}, {P['yield_to']}")
                a("s_cbranch_scc1 L_f1a_lazy")
                a("s_sleep 8")
                timeout(a, "L_f1a_yield")
            a("L_f1a_lazy:")

    seg_loop(a, "L_f1a", True, fill, finish, 1)
    for x in st + [flag]:
        a(x)


def phase1b(a, P):
    NS = P['f_slots']
    a("s_waitcnt vmcnt(0)")
    a("s_barrier")
    x_first(a)
    srd(a, SRD_A, P_GW, 1024)
    a(f"v_and_b32 {vr(V_T0)}, 7, v0")
    a(f"v_lshlrev_b32 {vr(V_T0)}, 4, {vr(V_T0)}")
    for i in range(8):
        a(f"buffer_load_dwordx4 {vr(GW + 4 * i, 4)}, {vr(V_T0)}, {sr(SRD_A,4)}, 0 offen offset:{i * 128}")
    srd(a, SRD_A, P_WQ, 512 * 8192)
    stage(a, 8, NS, lambda c: issue256(a, SRD_A, c, STG + (c % NS) * 16384),
          lambda c: consume256(a, 0, c, STG + (c % NS) * 16384))
    a(f"s_cmp_eq_u32 s{S_FFN}, 0")
    a("s_cbranch_scc1 L_f1b_skipw")
    srd(a, SRD_A, P_WG, 512 * 3584)
    srd(a, SRD_B, P_WU, 512 * 3584)
    a(f"s_lshl_b32 s{S_OFF}, s{S_H}, 7")
    a("s_barrier")

    def issue_gu(c):
        slot = STG + (c % NS) * 16384
        for i in range(4):
            m = i >> 1
            a(f"s_add_u32 m0, s{S_W1K}, {slot + m * 8192 + (i & 1) * 4096}")
            a(f"s_add_u32 s{S_T0}, s{S_OFF}, {(64 * c + 32 * (i & 1)) * 3584}")
            a(f"buffer_load_dwordx4 {vr(V_GU0 + m)}, {sr(SRD_A if m == 0 else SRD_B,4)}, s{S_T0} offen lds")

    def consume_gu(c):
        a(f"v_add_u32 {vr(V_T0)}, {STG + (c % NS) * 16384}, {vr(V_TRG)}")
        for tt in range(4):
            for jh in range(2):
                a(f"ds_read_b64_tr_b16 {ar(128 + (4 * c + tt) * 4 + 2 * jh, 2)}, {vr(V_T0)} offset:{tt * 2048 + jh * 512}")

    stage(a, 8, NS, issue_gu, consume_gu)
    a("L_f1b_skipw:")
    mark(a, 3, V_T0, dbg_base=6)

    ws = sr(SRD_WS, 4)
    GX, GT, UP, E = 128, 160, 168, 176
    c0 = -2.0 * (2.0 / math.pi) ** 0.5 * LOG2E
    D = "row_mask:0xf bank_mask:0xf"
    t = vr(V_T1)
    gate = [f"v_dot2_f32_bf16 {vr(V_T1 + (i & 1))}, {vr(GX + i)}, {vr(GW + i)}, {vr(V_T1 + (i & 1)) if i > 1 else 0}" for i in range(32)]
    gate2 = [f"v_add_f32 {t}, {t}, {vr(V_T2)}", f"v_add_f32_dpp {t}, {t}, {t} quad_perm:[1,0,3,2] {D}",
             f"v_add_f32_dpp {t}, {t}, {t} quad_perm:[2,3,0,1] {D}", f"v_add_f32_dpp {t}, {t}, {t} row_half_mirror {D}",
             f"v_mul_f32 {t}, {f32(-LOG2E)}, {t}", f"v_exp_f32 {t}, {t}", f"v_add_f32 {t}, 1.0, {t}", f"v_rcp_f32 {t}, {t}",
             f"ds_write_b32 {vr(V_OUT)}, {t}"]
    gelu = []
    for j in range(8):
        x, e = vr(GT + j), vr(E + j)
        gelu += [f"v_mul_f32 {e}, {x}, {x}", f"v_fmaak_f32 {e}, {vr(V_KM)}, {e}, {f32(c0)}", f"v_mul_f32 {e}, {e}, {x}", f"v_exp_f32 {e}, {e}"]
    gelu += [f"v_sub_f32 {vr(V_G)}, 1.0, {vr(V_G)}"]
    for j in range(8):
        e, u = vr(E + j), vr(UP + j)
        gelu += [f"v_add_f32 {e}, 1.0, {e}", f"v_mul_f32 {u}, {u}, {vr(V_G)}", f"v_rcp_f32 {e}, {e}"]
    gelu += [f"v_mul_f32 {vr(E + j)}, {vr(E + j)}, {vr(UP + j)}" for j in range(8)]
    gelu += [f"v_cvt_pk_bf16_f32 {vr(PK + 8 + j)}, {vr(E + 2 * j)}, {vr(E + 2 * j + 1)}" for j in range(4)]
    gread = f"ds_read_b32 {vr(V_G)}, {vr(V_GC)}"
    qst = [f"buffer_store_dwordx4 {vr(PK + 4 * bb, 4)}, {vr(V_RD)}, {ws}, s{S_PQ} offen offset:{bb * 1024}" for bb in range(2)]
    hst = f"s_add_u32 s{S_T3}, s{S_PREV}, {hex(HX)}\nbuffer_store_dwordx4 {vr(PK + 8, 4)}, {vr(V_L16W)}, {ws}, s{S_T3} offen"

    def fill():
        f = {0: [gread, f"v_add_u32 {vr(V_T0)}, s{S_XCUR}, {vr(V_XG)}"]}
        xr = [f"ds_read_b128 {vr(GX + 4 * i, 4)}, {vr(V_T0)} offset:{i * 128}" for i in range(8)]
        place(f, 2, xr, 1)
        place(f, 4, gelu[:32], 3)
        place(f, 15, [f"WAITL {gread}"] + gelu[32:], 4)
        place(f, 17, qst, 1)
        place(f, 30, [hst], 1)
        place(f, 32, [f"WAITL {xr[7]}"] + gate, 2)
        place(f, 50, gate2, 1)
        return f

    def finish():
        for j in range(8):
            a(f"v_mul_f32 {vr(UP + j)}, {vr(T1 + j)}, {vr(T1 + 8 + j)}")
            a(f"v_mov_b32 {vr(GT + j)}, {vr(T1 + j)}")
        pack(a, T0, PK)
        a(f"v_add_u32 {vr(V_GC)}, 128, {vr(V_GC)}")
        a(f"v_add_u32 {vr(V_OUT)}, 128, {vr(V_OUT)}")
        a("s_waitcnt lgkmcnt(0)")

    a(f"v_mov_b32 {vr(V_KM)}, {f32(c0 * 0.044715)}")
    for j in range(8):
        a(f"v_mov_b64 {vr(T1 + 2 * j, 2)}, 0")
        a(f"v_mov_b64 {vr(GT + 2 * j, 2)}, 0")
    a(f"s_lshl_b32 s{S_T0}, s{S_W}, 11")
    a(f"v_add_u32 {vr(V_RD)}, s{S_T0}, {vr(V_L16)}")
    a(f"v_lshrrev_b32 {vr(V_OUT)}, 3, v0")
    a(f"v_lshlrev_b32 {vr(V_OUT)}, 2, {vr(V_OUT)}")
    a(f"v_add_u32 {vr(V_OUT)}, {GB}, {vr(V_OUT)}")
    a(f"v_and_b32 {vr(V_GC)}, 31, {vr(V_LANE)}")
    a(f"v_lshlrev_b32 {vr(V_GC)}, 2, {vr(V_GC)}")
    a(f"v_add_u32 {vr(V_GC)}, {GB - 128}, {vr(V_GC)}")
    seg_loop(a, "L_f1b", False, fill, finish, 3, two_variants=True)
    a("s_barrier")
    for x in [gread] + qst + gelu[:32] + ["s_waitcnt lgkmcnt(0)"] + gelu[32:] + [hst]:
        a(x)
    a("s_waitcnt vmcnt(0)")
    a("s_barrier")


ACC, QF, HF, SX, SM, OA, PF, SEL, VMF = 64, 128, 160, 176, 192, 208, 240, 252, 24
RDB = [40, 44, 48, 52, 56, 60, SM, SM + 4]
A_V, A_K = 192, 224
V_KL = V_XF
V_MX, V_LX = V_XG, V_GC


def part_base(a, s_seg):
    a(f"s_lshl_b32 s{S_T0}, s{s_seg}, 20")
    a(f"s_lshl_b32 s{S_T1}, s{S_W}, 18")
    a(f"s_add_u32 s{S_T0}, s{S_T0}, s{S_T1}")
    a(f"s_lshl_b32 s{S_T1}, s{S_H}, 10")
    a(f"s_add_u32 s{S_T0}, s{S_T0}, s{S_T1}")
    a(f"s_add_u32 s{S_T0}, s{S_T0}, {hex(PART)}")


def phase3(a, P):
    NS = P['f_slots']
    l = vr(V_LANE)
    t0, t1, t2, t3 = (vr(x) for x in (V_T0, V_T1, V_T2, V_T3))
    CH = 17408
    base = 0x10C00
    srd(a, SRD_A, P_WO, 4096 * 1024)
    srd(a, SRD_B, P_WD, 1792 * 1024)
    a(f"v_lshrrev_b32 {t0}, 5, {l}")
    a(f"v_bfe_u32 {t1}, {l}, 2, 2")
    a(f"v_lshl_add_u32 {t0}, {t0}, 2, {t1}")
    a(f"v_mul_u32_u24 {t0}, 1088, {t0}")
    a(f"v_bfe_u32 {t1}, {l}, 4, 1")
    a(f"v_lshl_add_u32 {t0}, {t1}, 5, {t0}")
    a(f"v_and_b32 {t1}, 3, {l}")
    a(f"v_lshl_add_u32 {t0}, {t1}, 3, {t0}")
    a(f"s_lshl_b32 s{S_T0}, s{S_W}, 8")
    a(f"v_add_u32 {vr(V_TR)}, s{S_T0}, {t0}")
    a(f"s_mul_i32 s{S_XN}, s{S_W}, 1088")

    def mk(srdreg, abase, nk):
        def issue(c):
            for i in range(4):
                a(f"s_add_u32 m0, s{S_XN}, {base + (c % NS) * CH + 4 * i * 1088}")
                a(f"s_add_u32 s{S_T0}, s{S_OFF}, {(16 * c + 4 * i) * 1024}")
                a(f"buffer_load_dwordx4 {vr(V_L16W)}, {sr(srdreg,4)}, s{S_T0} offen lds")

        def consume(c):
            a(f"v_add_u32 {t0}, {base + (c % NS) * CH}, {vr(V_TR)}")
            for t in range(4):
                for jh in range(2):
                    a(f"ds_read_b64_tr_b16 {ar(abase + (t * nk + c) * 4 + 2 * jh, 2)}, {t0} offset:{jh * 8 * 1088 + 64 * t}")
        return issue, consume

    a(f"s_lshl_b32 s{S_OFF}, s{S_H}, 17")
    stage(a, 8, NS, *mk(SRD_A, 0, 8))
    a(f"s_cmp_eq_u32 s{S_FFN}, 0")
    a("s_cbranch_scc1 L_f3_skipw")
    a("s_barrier")
    a(f"s_lshl_b32 s{S_OFF}, s{S_H}, 16")
    stage(a, 4, NS, *mk(SRD_B, 128, 4))
    a("L_f3_skipw:")

    a(f"v_lshrrev_b32 {t0}, 5, {l}")
    a(f"v_and_b32 {t1}, 7, {l}")
    a(f"v_lshlrev_b32 {t1}, 4, {t1}")
    a(f"v_lshl_add_u32 {vr(V_KM)}, {t0}, 7, {t1}")
    a(f"v_and_b32 {t1}, 15, {l}")
    a(f"v_lshlrev_b32 {t1}, 4, {t1}")
    a(f"v_lshl_add_u32 {t2}, {t0}, 9, {t1}")
    a(f"v_bfe_u32 {t3}, {l}, 4, 1")
    a(f"v_lshl_add_u32 {vr(V_VM)}, {t3}, 3, {t2}")
    a(f"v_lshrrev_b32 {t2}, 4, {l}")
    a(f"v_lshl_add_u32 {t1}, {t2}, 10, {t1}")
    a(f"s_lshl_b32 s{S_T0}, s{S_W}, 8")
    a(f"v_add_u32 {vr(V_RD)}, s{S_T0}, {t1}")
    a(f"s_and_b32 s{S_T0}, s{S_W}, 1")
    a(f"s_lshl_b32 s{S_T0}, s{S_T0}, 14")
    a(f"s_lshr_b32 s{S_T1}, s{S_W}, 1")
    a(f"s_lshl_b32 s{S_T1}, s{S_T1}, 3")
    a(f"s_add_u32 s{S_T0}, s{S_T0}, s{S_T1}")
    a(f"s_lshl_b32 s{S_T1}, s{S_H}, 5")
    a(f"s_add_u32 s{S_T0}, s{S_T0}, s{S_T1}")
    a(f"v_and_b32 {t1}, 15, {l}")
    a(f"v_lshlrev_b32 {t1}, 10, {t1}")
    a(f"v_lshl_add_u32 {t1}, {t2}, 4, {t1}")
    a(f"v_add_u32 {t1}, s{S_T0}, {t1}")
    a(f"v_cmp_gt_u32 vcc, 2, {t2}")
    a(f"v_mov_b32 {t3}, {hex(OOB)}")
    a(f"v_cndmask_b32 {vr(V_OUT)}, {t3}, {t1}, vcc")
    a(f"v_and_b32 {t1}, 15, {l}")
    a(f"v_and_b32 {t2}, 1, {l}")
    a(f"v_lshlrev_b32 {t2}, 4, {t2}")
    a(f"v_mov_b32 {t3}, 0x3f80")
    a(f"v_lshlrev_b32 {t3}, {t2}, {t3}")
    a(f"v_lshrrev_b32 {t1}, 1, {t1}")
    for r in range(4):
        a(f"v_cmp_eq_u32 vcc, {r}, {t1}")
        a(f"v_cndmask_b32 {vr(SEL + r)}, 0, {t3}, vcc")
    a(f"v_and_b32 {t1}, 31, {l}")
    a(f"v_lshlrev_b32 {t0}, 2, {t0}")
    a(f"v_sub_u32 {t1}, {t1}, {t0}")
    for i in range(16):
        a(f"v_cmp_le_i32 {sr(S_MASK + 2 * i, 2)}, {8 * (i >> 2) + (i & 3)}, {t1}")
    srd(a, SRD_A, P_OUT, 2048 * 1024)
    a(f"s_sub_u32 s{S_T2}, s{S_SEG}, 7")
    part_base(a, S_T2)
    for k in range(8):
        a(f"s_add_u32 s{S_T1}, s{S_T0}, {k * 32768}")
        a(f"buffer_store_dwordx4 {vr(SENT,4)}, {vr(V_L16)}, {sr(SRD_WS,4)}, s{S_T1} offen sc1")
    wait_all_arrived(a, V_T0)
    mark(a, 5, V_T0, dbg_base=6)

    ws = sr(SRD_WS, 4)
    GS, NOFF, NQ = 33, 31, 35

    def offsets(s_seg):
        a(f"s_lshl_b32 s{NOFF}, s{S_H}, 6")
        a(f"s_add_u32 s{NOFF}, s{NOFF}, s{s_seg}")
        a(f"s_lshl_b32 s{NQ}, s{NOFF}, 13")
        a(f"s_lshl_b32 s{NOFF}, s{NOFF}, 15")

    def ld(dst, addr, base, off, flag="", op="buffer_load_dwordx4"):
        return f"s_add_u32 s{S_T3}, s{base}, {hex(off & ~0xfff)}\n{op} {dst}, {vr(addr)}, {ws}, s{S_T3} offen offset:{off & 0xfff} {flag}"
    ld_h = [ld(vr(HF + 4 * k, 4), V_L16, NOFF, HX + k * 1024) for k in range(4)]
    ld_k = [ld(ar(A_K + 4 * k, 4), V_KP, NOFF, KX + (k >> 1) * 4096 + (k & 1) * 1024) for k in range(8)]
    ld_v = [ld(ar(A_V + 4 * k, 4), V_L16, NOFF, VX + (k >> 1) * 4096 + (k & 1) * 1024) for k in range(8)]
    ld_q = [ld(vr(QF + 4 * k, 4), V_L16, NQ, QX + k * 1024) for k in range(8)]

    def umax(first, b, n):
        if first:
            a(f"v_max_u32 {t0}, {vr(b)}, {vr(b + 1)}")
        else:
            a(f"v_max3_u32 {t0}, {t0}, {vr(b)}, {vr(b + 1)}")
        if n == 4:
            a(f"v_max3_u32 {t0}, {t0}, {vr(b + 2)}, {vr(b + 3)}")

    def gather(tag, s_seg, flagged):
        if flagged:
            a(f"s_lshl_b32 s{S_T1}, s{s_seg}, 9")
            a(f"s_lshr_b32 s{S_T2}, s{S_H}, 3")
            a(f"s_lshl_b32 s{S_T2}, s{S_T2}, 7")
            a(f"s_add_u32 s{S_T1}, s{S_T1}, s{S_T2}")
            a(f"s_add_u32 s{S_T1}, s{S_T1}, {hex(FP)}")
            a(f"v_and_b32 {t1}, 31, {l}")
            a(f"v_lshlrev_b32 {t1}, 2, {t1}")
            a(f"{tag}_fp:")
            a(f"buffer_load_dword {t0}, {t1}, {ws}, s{S_T1} offen sc1")
            a("s_waitcnt vmcnt(0)")
            a(f"v_cmp_ne_u32 vcc, 1, {t0}")
            a(f"s_cbranch_vccz {tag}_fp_ok")
            a("s_sleep 1")
            timeout(a, f"{tag}_fp")
            a(f"{tag}_fp_ok:")
        a(f"s_lshl_b32 s{S_T0}, s{s_seg}, 20")
        a(f"s_lshl_b32 s{S_T1}, s{S_H}, 15")
        a(f"s_add_u32 s{S_T0}, s{S_T0}, s{S_T1}")
        a(f"s_add_u32 s{S_T0}, s{S_T0}, {hex(PART)}")
        a(f"{tag}_rd:")
        for i in range(8):
            a(f"s_add_u32 s{S_T1}, s{S_T0}, {i * 4096}")
            a(f"buffer_load_dwordx4 {vr(RDB[i], 4)}, {vr(V_RD)}, {ws}, s{S_T1} offen sc1")
        R = SM + 8
        for i in range(8):
            a(f"s_waitcnt vmcnt({7 - i})")
            a(f"v_mfma_f32_16x16x32_bf16 {vr(R,4)}, {vr(SEL,4)}, {vr(RDB[i], 4)}, {'0' if i == 0 else vr(R, 4)}")
            if not flagged:
                umax(i == 0, RDB[i], 4)
        if not flagged:
            a(f"v_cmp_eq_u32 vcc, -1, {t0}")
            a(f"s_cbranch_vccz {tag}_rd_ok")
            timeout(a, f"{tag}_rd")
            a(f"{tag}_rd_ok:")
        a(f"s_lshl_b32 s{S_T0}, s{s_seg}, 15")
        a(f"v_cvt_pk_bf16_f32 {vr(R)}, {vr(R)}, {vr(R + 1)}")
        a(f"v_cvt_pk_bf16_f32 {vr(R + 1)}, {vr(R + 2)}, {vr(R + 3)}")
        a(f"buffer_store_dwordx2 {vr(R,2)}, {vr(V_OUT)}, {sr(SRD_A,4)}, s{S_T0} offen")

    a(f"v_and_b32 {t0}, 31, {l}")
    a(f"s_lshr_b32 s{S_T0}, s{S_W1K}, 1")
    a(f"v_lshl_add_u32 {vr(V_KL)}, {t0}, 4, s{S_T0}")
    for j in range(4):
        a(f"v_mov_b64 {vr(VMF + 4 * j + 2, 2)}, 0")
    a(f"s_mov_b32 s{S_I}, 0")
    a(f"s_mov_b32 s{S_SEG}, s{S_SUB}")
    offsets(S_SEG)
    for x in ld_h + ld_k + ld_v + ld_q:
        a(x)
    a("L_f3:")
    a(f"s_mov_b32 s{S_OFF}, s{NOFF}")
    a(f"s_lshl_b32 s{S_T0}, s{S_I}, 7")
    a(f"v_and_b32 {t0}, 31, {l}")
    a(f"v_lshl_add_u32 {t0}, {t0}, 2, s{S_T0}")
    a(f"v_add_u32 {t0}, {GB}, {t0}")
    a(f"ds_read_b32 {vr(V_G)}, {t0}")
    a(f"s_cmp_eq_u32 s{S_FFN}, 0")
    a("s_cbranch_scc1 L_f3_zero")
    a("s_waitcnt vmcnt(9)")
    for k in range(4):
        for t in range(4):
            c = "0" if k == 0 else vr(ACC + 16 * t, 16)
            a(f"v_mfma_f32_32x32x16_bf16 {vr(ACC + 16 * t, 16)}, {ar(128 + (t * 4 + k) * 4, 4)}, {vr(HF + 4 * k, 4)}, {c}")
    a("s_branch L_f3_ffn_done")
    a("L_f3_zero:")
    for j in range(32):
        a(f"v_mov_b64 {vr(ACC + 2 * j, 2)}, 0")
    a("L_f3_ffn_done:")
    a("s_waitcnt vmcnt(0) lgkmcnt(0)")
    for k in range(8):
        c = "0" if k == 0 else vr(SX, 16)
        a(f"v_mfma_f32_32x32x16_bf16 {vr(SX,16)}, {ar(A_K + 4 * k, 4)}, {vr(QF + 4 * k, 4)}, {c}")
    a(f"v_mov_b32 {t3}, 0xff800000")
    for i in range(16):
        a(f"v_cndmask_b32 {vr(SX + i)}, {t3}, {vr(SX + i)}, {sr(S_MASK + 2 * i, 2)}")
    a(f"v_max3_f32 {t2}, {vr(SX)}, {vr(SX + 1)}, {vr(SX + 2)}")
    for i in range(3, 15, 2):
        a(f"v_max3_f32 {t2}, {t2}, {vr(SX + i)}, {vr(SX + i + 1)}")
    a(f"v_max_f32 {t2}, {t2}, {vr(SX + 15)}")
    a(f"s_mov_b32 s{S_T0}, {C_EXP}")
    a(f"v_mov_b32 {t1}, {t2}")
    a(f"v_permlane32_swap_b32 {t1}, {t2}")
    a(f"v_max_f32 {t2}, {t1}, {t2}")
    a(f"v_mul_f32 {vr(V_MX)}, s{S_T0}, {t2}")
    for r in range(16):
        a(f"v_fma_f32 {vr(SX + r)}, {vr(SX + r)}, s{S_T0}, -{vr(V_MX)}")
        a(f"v_exp_f32 {vr(SX + r)}, {vr(SX + r)}")
    a(f"v_add_f32 {vr(V_LX)}, {vr(SX)}, {vr(SX + 1)}")
    a(f"v_add_f32 {t1}, {vr(SX + 2)}, {vr(SX + 3)}")
    for r in range(4, 16, 2):
        a(f"v_add_f32 {vr(V_LX)}, {vr(V_LX)}, {vr(SX + r)}")
        a(f"v_add_f32 {t1}, {t1}, {vr(SX + r + 1)}")
    a(f"v_add_f32 {vr(V_LX)}, {vr(V_LX)}, {t1}")
    a(f"s_cmp_eq_u32 s{S_I}, 0")
    a("s_cbranch_scc1 L_f3_nog")
    a(f"s_sub_u32 s{S_T3}, s{S_SEG}, 7")
    gather("L_f3g", S_T3, True)
    a("L_f3_nog:")
    mark(a, 30, V_T0, per=S_I)
    if P["far_one"]:
        a(f"s_cmp_lg_u32 s{S_W}, 0")
        a("s_cbranch_scc1 L_f3_near")
    a(f"s_movk_i32 s{S_T1}, {hex(KM + 2048)}")
    a(f"s_cmp_eq_u32 s{S_SEG}, 63")
    a(f"s_cselect_b32 s{S_T1}, {hex(KM - 0x8000 + (1 << 32))}, s{S_T1}")
    a(f"s_add_u32 s{S_T1}, s{S_T1}, s{S_OFF}")
    a("L_f3_far:")
    if P["far_op"] == "atomic":
        a(f"v_mov_b32 {t0}, 0")
        a("s_mov_b64 exec, 1")
        a(f"buffer_atomic_or {t0}, off, {ws}, s{S_T1} sc0")
        a("s_mov_b64 exec, -1")
    else:
        a(f"buffer_load_dword {t0}, off, {ws}, s{S_T1} {P['far_op']}")
    a("s_waitcnt vmcnt(0)")
    a(f"v_readfirstlane_b32 s{S_T0}, {t0}")
    a(f"s_cmp_lg_u32 s{S_T0}, -1")
    a("s_cbranch_scc1 L_f3_near")
    a(f"s_sleep {P['far_sleep']}")
    timeout(a, "L_f3_far")
    a("L_f3_near:")
    mark(a, 62, V_T0) if P.get("f3marks") else None
    if P["far_one"]:
        a("s_barrier")
    a(f"s_cmp_eq_u32 s{S_SEG}, 63")
    a("s_cbranch_scc0 L_f3_n1")
    if P["near_sleep"][1]:
        a(f"s_sleep {P['near_sleep'][1]}")
    a("s_branch L_f3_km")
    a("L_f3_n1:")
    if P["near_sleep"][0]:
        a(f"s_sleep {P['near_sleep'][0]}")
    a("L_f3_km:")
    a(f"s_add_u32 s{S_T1}, s{S_OFF}, {hex(KM)}")
    a(f"buffer_load_dwordx4 {vr(PF,4)}, {vr(V_KL)}, {ws}, s{S_T1} offen sc1")
    a(f"buffer_load_dwordx4 {vr(PF + 4, 4)}, {vr(V_L16W)}, {ws}, s{S_T1} offen offset:2048 sc1")
    a(f"s_and_b32 s{S_T0}, s{S_I}, 1")
    a(f"s_lshl_b32 s{S_T0}, s{S_T0}, 13")
    a(f"v_add_u32 {t1}, s{S_T0}, {vr(V_KL)}")
    a(f"v_add_u32 {t2}, s{S_T0}, {vr(V_L16W)}")
    a("s_waitcnt vmcnt(0)")
    umax(True, PF, 4)
    umax(False, PF + 4, 4)
    a(f"v_cmp_eq_u32 vcc, -1, {t0}")
    a("s_cbranch_vccz L_f3_got")
    timeout(a, "L_f3_km")
    a("L_f3_got:")
    a(f"ds_write_b128 {t1}, {vr(PF,4)}")
    a(f"ds_write_b128 {t2}, {vr(PF + 4, 4)} offset:2048")
    a(f"v_add_u32 {t1}, s{S_T0}, {vr(V_KM)}")
    a(f"v_add_u32 {t2}, s{S_T0}, {vr(V_VM)}")
    a("s_waitcnt lgkmcnt(0)")
    a("s_barrier")
    kr = [f"ds_read_b128 {vr(OA + 4 * k, 4)}, {t1} offset:{k * 256}" for k in range(8)]
    vrd = [f"ds_read2st64_b32 {vr(VMF + 4 * et, 2)}, {t2} offset0:{8 + 4 * et} offset1:{9 + 4 * et}" for et in range(4)]
    for x in kr + vrd:
        a(x)
    for k in range(8):
        a(f"WAITL {kr[k]}")
        a(f"v_mfma_f32_32x32x16_bf16 {vr(SM,16)}, {vr(OA + 4 * k, 4)}, {vr(QF + 4 * k, 4)}, {'0' if k == 0 else vr(SM, 16)}")
    a("s_waitcnt lgkmcnt(0)")
    a("L_f3_km_ok:")
    mark(a, 31, V_T0, per=S_I)
    a(f"s_mov_b32 s{S_T0}, {C_EXP}")
    a(f"v_max3_f32 {t2}, {vr(SM)}, {vr(SM + 1)}, {vr(SM + 2)}")
    a(f"v_max_f32 {t2}, {t2}, {vr(SM + 3)}")
    a(f"v_mov_b32 {t1}, {t2}")
    a(f"v_permlane32_swap_b32 {t1}, {t2}")
    a(f"v_max_f32 {t2}, {t1}, {t2}")
    a(f"v_mul_f32 {t2}, s{S_T0}, {t2}")
    a(f"v_max_f32 {t2}, {t2}, {vr(V_MX)}")
    a(f"v_sub_f32 {t3}, {vr(V_MX)}, {t2}")
    for r in range(4):
        a(f"v_fma_f32 {vr(SM + r)}, {vr(SM + r)}, s{S_T0}, -{t2}")
    a(f"v_exp_f32 {t3}, {t3}")
    for r in range(4):
        a(f"v_exp_f32 {vr(SM + r)}, {vr(SM + r)}")
    a(f"v_add_f32 {t0}, {vr(SM)}, {vr(SM + 1)}")
    a(f"v_add_f32 {t1}, {vr(SM + 2)}, {vr(SM + 3)}")
    a(f"v_add_f32 {t0}, {t0}, {t1}")
    a(f"v_fma_f32 {t0}, {vr(V_LX)}, {t3}, {t0}")
    a(f"v_mov_b32 {t1}, {t0}")
    a(f"v_permlane32_swap_b32 {t1}, {t0}")
    a(f"v_add_f32 {t0}, {t1}, {t0}")
    a(f"v_rcp_f32 {t0}, {t0}")
    a(f"v_mul_f32 {t0}, {t0}, {vr(V_G)}")
    a(f"v_mul_f32 {t2}, {t3}, {t0}")
    for r in range(0, 16, 2):
        a(f"v_pk_mul_f32 {vr(SX + r, 2)}, {vr(SX + r, 2)}, {vr(V_T2 - 1, 2)} op_sel:[0,1] op_sel_hi:[1,1]")
    for r in range(4):
        a(f"v_mul_f32 {vr(SM + r)}, {vr(SM + r)}, {t0}")
    for j in range(8):
        a(f"v_cvt_pk_bf16_f32 {vr(PF + j)}, {vr(SX + 2 * j)}, {vr(SX + 2 * j + 1)}")
    for j in range(2):
        a(f"v_cvt_pk_bf16_f32 {vr(PF + 8 + j)}, {vr(SM + 2 * j)}, {vr(SM + 2 * j + 1)}")
    a(f"v_mov_b64 {vr(PF + 10, 2)}, 0")

    def pv(et):
        o = vr(OA + 16 * (et & 1), 16)
        a(f"v_mfma_f32_32x32x16_bf16 {o}, {ar(A_V + 8 * et, 4)}, {vr(PF, 4)}, 0")
        a(f"v_mfma_f32_32x32x16_bf16 {o}, {ar(A_V + 8 * et + 4, 4)}, {vr(PF + 4, 4)}, {o}")
        a(f"v_mfma_f32_32x32x16_bf16 {o}, {vr(VMF + 4 * et, 4)}, {vr(PF + 8, 4)}, {o}")

    def cv(et):
        o = OA + 16 * (et & 1)
        for j in range(8):
            a(f"v_cvt_pk_bf16_f32 {vr(QF + 8 * et + j)}, {vr(o + 2 * j)}, {vr(o + 2 * j + 1)}")

    pv(0); pv(1); cv(0); pv(2); cv(1); pv(3); cv(2)
    part_base(a, S_SEG)
    a(f"s_add_u32 s{S_T2}, s{S_SEG}, 7")
    offsets(S_T2)

    def project(pre):
        pre = list(pre)

        def wo_t(t, ks, n=0):
            for k in ks:
                a(f"v_mfma_f32_32x32x16_bf16 {vr(ACC + 16 * t, 16)}, {ar((t * 8 + k) * 4, 4)}, {vr(QF + 4 * k, 4)}, {vr(ACC + 16 * t, 16)}")
                for _ in range(n):
                    if pre:
                        a(pre.pop(0))

        def out_t(t, bb):
            p = SX + 4 * (2 * t + bb)
            for j in range(4):
                a(f"v_cvt_pk_bf16_f32 {vr(p + j)}, {vr(ACC + 16 * t + 8 * bb + 2 * j)}, {vr(ACC + 16 * t + 8 * bb + 2 * j + 1)}")
            a(f"s_add_u32 s{S_T1}, s{S_T0}, {(2 * t + bb) * 32768}")
            a(f"buffer_store_dwordx4 {vr(p,4)}, {vr(V_L16)}, {ws}, s{S_T1} offen sc1")
        wo_t(0, range(3)); cv(3); wo_t(0, range(3, 8), 1)
        for t in range(1, 4):
            wo_t(t, range(4), 2); out_t(t - 1, 0); wo_t(t, range(4, 6), 1); out_t(t - 1, 1); wo_t(t, range(6, 8), 1)
        assert not pre
        out_t(3, 0); out_t(3, 1)

    a(f"s_add_u32 s{S_T1}, s{S_I}, 1")
    a(f"s_cmp_eq_u32 s{S_T1}, s{S_NSEG}")
    a("s_cbranch_scc1 L_f3_last")
    project(ld_h + ld_k + ld_v)
    for x in ld_q:
        a(x)
    a(f"s_lshl_b32 s{S_T1}, s{S_SEG}, 9")
    a(f"s_lshl_b32 s{S_T2}, s{S_W}, 7")
    a(f"s_add_u32 s{S_T1}, s{S_T1}, s{S_T2}")
    a(f"s_lshl_b32 s{S_T2}, s{S_H}, 2")
    a(f"s_add_u32 s{S_T1}, s{S_T1}, s{S_T2}")
    a(f"s_add_u32 s{S_T1}, s{S_T1}, {hex(FP)}")
    a(f"v_mov_b32 {t0}, 1")
    a("s_waitcnt vmcnt(8)")
    a(f"buffer_store_dword {t0}, {vr(V_FL)}, {ws}, s{S_T1} offen sc1")
    mark(a, 32, V_T0, per=S_I)
    a(f"s_add_u32 s{S_SEG}, s{S_SEG}, 7")
    a(f"s_add_u32 s{S_I}, s{S_I}, 1")
    a("s_branch L_f3")
    a("L_f3_last:")
    project([])
    mark(a, 60, V_T0) if P.get("f3marks") else None
    if P["last_wait"] is not None:
        a(f"s_waitcnt vmcnt({P['last_wait']})")
    mark(a, 61, V_T0) if P.get("f3marks") else None
    gather("L_f3l", S_SEG, False)
    mark(a, 32, V_T0, per=S_I)


def follower(a, P):
    a("L_follower:")
    if P.get("f_none"):
        a(f"s_mov_b32 s{S_T0}, 0")
        a("s_barrier")
        arrive(a, 20)
        a("s_branch L_exit")
    a(f"s_and_b32 s{S_T0}, s2, 7")
    a(f"s_sub_u32 s{S_T0}, s{S_T0}, 1")
    a(f"s_lshl_b32 s{S_T0}, s{S_T0}, 5")
    a(f"s_lshr_b32 s{S_T1}, s2, 3")
    a(f"s_add_u32 s{S_T0}, s{S_T0}, s{S_T1}")
    a(f"s_mul_i32 s{S_H}, s{S_T0}, 9363")
    a(f"s_lshr_b32 s{S_H}, s{S_H}, 16")
    a(f"s_mul_i32 s{S_T1}, s{S_H}, 7")
    a(f"s_sub_u32 s{S_SUB}, s{S_T0}, s{S_T1}")
    a(f"s_cmp_eq_u32 s{S_SUB}, 0")
    a(f"s_cselect_b32 s{S_NSEG}, 10, 9")
    a(f"s_cmp_lt_u32 s{S_H}, 28")
    a(f"s_cselect_b32 s{S_FFN}, 1, 0")
    lane_setup(a)
    srd(a, SRD_C, P_X, 2048 * 1024)

    def meanwhile():
        t0, t1, t2, t3 = (vr(x) for x in (V_T0, V_T1, V_T2, V_T3))
        a(f"v_mul_u32_u24 {t0}, 7, {vr(V_LANE)}")
        a(f"v_add_u32 {t0}, s{S_SUB}, {t0}")
        a(f"v_cmp_gt_u32 vcc, 64, {t0}")
        a(f"v_mov_b32 {t3}, {hex(OOB)}")
        a(f"v_lshlrev_b32 {t1}, 2, {t0}")
        a(f"v_cndmask_b32 {t1}, {t3}, {t1}, vcc")
        a(f"v_lshlrev_b32 {t2}, 9, {t0}")
        a(f"v_cndmask_b32 {t2}, {t3}, {t2}, vcc")
        a(f"v_mov_b32 {t0}, 0")
        a(f"s_lshl_b32 s{S_T0}, s{S_H}, 10")
        a(f"s_lshl_b32 s{S_T1}, s{S_W}, 8")
        a(f"s_add_u32 s{S_T0}, s{S_T0}, s{S_T1}")
        a(f"s_add_u32 s{S_T0}, s{S_T0}, {hex(FKV)}")
        a(f"buffer_store_dword {t0}, {t1}, {sr(SRD_WS,4)}, s{S_T0} offen sc1")
        a(f"s_lshl_b32 s{S_T0}, s{S_H}, 2")
        a(f"s_lshl_b32 s{S_T1}, s{S_W}, 7")
        a(f"s_add_u32 s{S_T0}, s{S_T0}, s{S_T1}")
        a(f"s_add_u32 s{S_T0}, s{S_T0}, {hex(FP)}")
        a(f"buffer_store_dword {t0}, {t2}, {sr(SRD_WS,4)}, s{S_T0} offen sc1")
        x_first(a)

    mark(a, 0, V_T0, dbg_base=6)
    phase1a(a, meanwhile, 10, P)
    mark(a, 2, V_T0, dbg_base=6)
    if P.get("f_exit") == 1:
        a("s_branch L_exit")
    phase1b(a, P)
    mark(a, 4, V_T0, dbg_base=6)
    if P.get("f_exit") == 2:
        a("s_branch L_exit")
    phase3(a, P)
    mark(a, 6, V_T0, dbg_base=6)
    a("s_branch L_exit")
```

```python
from asmlib import vr, ar, sr, Ins
from common import *

L_MEM, L_Q, L_K, L_OWN, L_SP, L_O, L_DUMMY, L_SEL, L_W = 0, 0x2000, 0x2900, 0x3200, 0x5600, 0x6600, 0x6E00, 0x7600, 0x8000
PS = 576
(V_L16, V_WL0, V_WL1, V_MW, V_QW, V_TRQ, V_W2, V_R2, V_OW, V_PS, V_MS, V_TD, V_VX, V_KMS, V_IDX, V_SPW) = range(16)
QA, KA, VA, KXF, VXF, TMP, ST, MEM = 16, 24, 32, 40, 48, 56, 64, 96
LDS_SET = [("q", 0, 0), ("q", 1, 0), ("k", 2, 0), ("k", 3, 0), ("v", 6, 0), ("v", 7, 0), ("o", 0, 3), ("o", 1, 3)]
_HOME = {}
for _m, _kk, _tp in [("o", kk, tp) for tp in range(4) for kk in range(2)] + [(m, kk, 0) for m in "kqv" for kk in range(8)]:
    if (_m, _kk, _tp) not in LDS_SET:
        _n = len(_HOME) * 16
        _HOME[(_m, _kk, _tp)] = ("a", _n) if _n < 256 else ("v", _n - 128)


def wreg(m, kk, et, tp=0):
    if (m, kk, tp) in LDS_SET:
        return "v", ST + 16 * (kk & 1) + 8 * et
    k, b = _HOME[(m, kk, tp)]
    return k, b + 8 * et


def wop(m, kk, et, tp=0):
    k, b = wreg(m, kk, et, tp)
    return (ar if k == "a" else vr)(b, 8)
S_S, S_W1K, S_KV, S_RPC, S_RPO, S_RMC, S_RMO, S_OFF, S_RPL, S_KMO, S_C, S_FMO, S_FKO = range(70, 83)
S_KVM = 84
S_T4, S_T5 = 86, 87
S_TK, S_TKH, S_TWO = 81, 77, 74
S_ONE, S_CC, S_VAL, S_RML, S_RMS, S_KOWN = 16, 18, 12, 14, 15, 83
DPP = "row_mask:0xf bank_mask:0xf"
NOSW = [0]
SEG = [64]


def smf(a, d, x, w):
    a(f"v_smfmac_f32_16x16x64_bf16 {vr(d,4)}, {vr(x,4)}, {w}, {vr(V_IDX)}")


def lane_ids(a):
    T = list(range(100, 110))
    l, c, g, t0, t1, t2, t3, r, cc, f = (vr(x) for x in T)
    a(f"v_and_b32 {l}, 63, v0")
    a(f"v_and_b32 {c}, 15, {l}")
    a(f"v_lshrrev_b32 {g}, 4, {l}")
    a(f"v_bfe_u32 {r}, {l}, 2, 2")
    a(f"v_and_b32 {cc}, 3, {l}")
    a(f"s_lshl_b32 s{S_W1K}, s{S_W}, 10")


def setup_staging(a):
    T = list(range(100, 110))
    l, c, g, t0, t1, t2, t3, r, cc, f = (vr(x) for x in T)
    w = f"s{S_W}"
    a(f"s_lshl_b32 s{S_T0}, {w}, 1")
    a(f"v_and_b32 {f}, 1, {g}")
    a(f"v_or_b32 {f}, s{S_T0}, {f}")
    a(f"v_lshlrev_b32 {f}, 1, {f}")
    a(f"v_xor_b32 {t0}, {c}, {f}" if not NOSW[0] else f"v_mov_b32 {t0}, {c}")
    a(f"s_lshl_b32 s{S_T0}, {w}, 2")
    a(f"v_add_u32 {t1}, s{S_T0}, {g}")
    a(f"v_lshlrev_b32 {t2}, 4, {t0}")
    a(f"v_lshl_add_u32 v116, {t1}, 13, {t2}")
    a(f"v_lshl_add_u32 v117, {t1}, 10, {t2}")
    a(f"v_lshrrev_b32 {t0}, 1, {g}")
    a(f"v_lshlrev_b32 {t0}, 4, {t0}")
    a(f"v_lshrrev_b32 {t1}, 1, {r}")
    a(f"v_lshl_add_u32 {t0}, {t1}, 3, {t0}")
    a(f"v_and_b32 {t2}, 1, {g}")
    a(f"v_lshl_add_u32 {t0}, {t2}, 2, {t0}")
    a(f"v_and_b32 {f}, 1, {r}")
    a(f"v_add_u32 {t0}, {t0}, {f}")
    a(f"v_lshl_add_u32 {f}, {t2}, 1, {f}")
    a(f"v_lshl_add_u32 {f}, {t1}, 2, {f}")
    a(f"v_lshlrev_b32 {f}, 1, {f}")
    a(f"v_lshrrev_b32 {t1}, 1, {cc}")
    a(f"v_add_u32 {t1}, s{S_T0}, {t1}")
    a(f"v_xor_b32 {t1}, {t1}, {f}")
    a(f"v_lshlrev_b32 {t1}, 4, {t1}")
    a(f"v_lshl_add_u32 {t0}, {t0}, 8, {t1}")
    a(f"v_and_b32 {t1}, 1, {cc}")
    a(f"v_lshl_add_u32 v118, {t1}, 3, {t0}")
    a("v_xor_b32 v119, 32, v118")


def setup(a):
    T = list(range(100, 110))
    l, c, g, t0, t1, t2, t3, r, cc, f = (vr(x) for x in T)
    w = f"s{S_W}"
    a(f"v_lshlrev_b32 {vr(V_L16)}, 4, {l}")
    a(f"v_add_u32 {vr(V_SPW)}, s{S_W1K}, {vr(V_L16)}")
    a(f"s_lshl_b32 s{S_T0}, {w}, 12")
    a(f"s_add_u32 s{S_T0}, s{S_T0}, {L_W}")
    a(f"v_add_u32 {vr(V_WL0)}, s{S_T0}, {vr(V_L16)}")
    a(f"v_add_u32 {vr(V_WL1)}, 0x10000, {vr(V_WL0)}")
    a(f"v_lshrrev_b32 {t0}, 5, {l}")
    a(f"v_bfe_u32 {t1}, {l}, 1, 1")
    a(f"v_lshl_add_u32 {t0}, {t0}, 1, {t1}")
    a(f"v_bfe_u32 {t1}, {l}, 2, 3")
    a(f"v_lshlrev_b32 {t1}, 5, {t1}")
    a(f"v_lshl_add_u32 {t0}, {t0}, 8, {t1}")
    a(f"v_and_b32 {t1}, 1, {l}")
    a(f"v_lshl_add_u32 {t0}, {t1}, 4, {t0}")
    a(f"s_lshl_b32 s{S_T0}, {w}, 11")
    a(f"v_add_u32 {vr(V_MW)}, s{S_T0}, {t0}")
    a(f"v_mul_u32_u24 {t0}, {PS}, {g}")
    a(f"v_lshl_add_u32 {t0}, {c}, 3, {t0}")
    a(f"s_and_b32 s{S_T0}, {w}, 1")
    a(f"s_lshl_b32 s{S_KOWN}, s{S_T0}, 7")
    a(f"s_lshr_b32 s{S_T1}, {w}, 1")
    a(f"s_lshl_b32 s{S_T1}, s{S_T1}, 2")
    a(f"s_add_u32 s{S_T0}, s{S_KOWN}, s{S_T1}")
    a(f"v_add_u32 {vr(V_QW)}, s{S_T0}, {t0}")
    a(f"s_mul_i32 s{S_T1}, {w}, 2304")
    a(f"s_add_u32 s{S_T1}, s{S_T1}, {L_OWN}")
    a(f"v_add_u32 {vr(V_W2)}, s{S_T1}, {t0}")
    a(f"v_mul_u32_u24 {t0}, {PS}, {cc}")
    a(f"v_and_b32 {t2}, 1, {g}")
    a(f"v_lshl_add_u32 {t2}, {t2}, 2, {r}")
    a(f"v_lshl_add_u32 {t0}, {t2}, 3, {t0}")
    a(f"v_lshrrev_b32 {t1}, 1, {g}")
    a(f"v_lshl_add_u32 {vr(V_TRQ)}, {t1}, 8, {t0}")
    a(f"v_lshl_add_u32 {t0}, {t1}, 7, {t0}")
    a(f"v_add_u32 {vr(V_R2)}, s{S_T1}, {t0}")
    a(f"v_lshlrev_b32 {t0}, 6, {r}")
    a(f"v_lshl_add_u32 {t0}, {t1}, 5, {t0}")
    a(f"v_and_b32 {t1}, 1, {cc}")
    a(f"v_lshl_add_u32 {t0}, {t1}, 4, {t0}")
    a(f"v_and_b32 {t2}, 1, {g}")
    a(f"v_lshl_add_u32 {t0}, {t2}, 3, {t0}")
    a(f"s_lshl_b32 s{S_T0}, {w}, 9")
    a(f"v_add_u32 {t0}, s{S_T0}, {t0}")
    a(f"v_xor_b32 {t2}, 8, {t0}")
    a(f"v_add_u32 {t2}, {L_DUMMY}, {t2}")
    a(f"v_add_u32 {t0}, {L_O}, {t0}")
    a(f"v_cmp_gt_u32 vcc, 2, {cc}")
    a(f"v_cndmask_b32 {vr(V_OW)}, {t2}, {t0}, vcc")
    a(f"v_mov_b32 {t0}, 0x4444")
    a(f"v_mov_b32 {t2}, 0xeeee")
    a(f"v_cndmask_b32 {vr(V_IDX)}, {t2}, {t0}, vcc")
    a(f"v_lshl_add_u32 {t0}, {r}, 1, {t1}")
    a(f"v_lshlrev_b32 {t0}, 4, {t0}")
    a(f"v_lshl_add_u32 {t0}, {g}, 7, {t0}")
    a(f"v_add_u32 {t0}, s{S_T0}, {t0}")
    a(f"v_mov_b32 {t3}, {hex(OOB)}")
    a(f"v_lshrrev_b32 {t1}, 1, {cc}")
    a(f"s_lshr_b32 s{S_T1}, {w}, 1")
    a(f"v_cmp_eq_u32 vcc, s{S_T1}, {t1}")
    a(f"v_cndmask_b32 {vr(V_KMS)}, {t3}, {t0}, vcc")
    a(f"v_lshrrev_b32 {t0}, 3, {c}")
    a(f"v_lshl_add_u32 {t0}, {g}, 1, {t0}")
    a(f"s_lshl_b32 s{S_T0}, {w}, 3")
    a(f"v_add_u32 {t0}, s{S_T0}, {t0}")
    a(f"v_and_b32 {t1}, 7, {c}")
    a(f"v_lshlrev_b32 {t1}, 3, {t1}")
    a(f"v_mul_u32_u24 {t0}, {128 * SEG[0]}, {t0}")
    a(f"v_add_u32 {vr(V_PS)}, {t0}, {t1}")
    a(f"v_lshlrev_b32 {t0}, 4, {g}")
    a(f"v_lshl_add_u32 {t0}, {c}, 2, {t0}")
    a(f"v_cmp_gt_u32 vcc, 4, {c}")
    a(f"v_cndmask_b32 {vr(V_MS)}, {t3}, {t0}, vcc")
    a(f"s_lshl_b32 s{S_T0}, {w}, 12")
    a(f"v_lshlrev_b32 {t0}, 9, {g}")
    a(f"v_add_u32 {t0}, s{S_T0}, {t0}")
    a(f"v_lshl_add_u32 {vr(V_VX)}, {c}, 4, {t0}")
    S = 112
    a(f"v_lshrrev_b32 {t0}, 2, {c}")
    a(f"v_and_b32 {t1}, 1, {c}")
    a(f"v_lshl_add_u32 {t0}, {t1}, 2, {t0}")
    a(f"v_and_b32 {t1}, 1, {t0}")
    a(f"v_lshrrev_b32 {t0}, 1, {t0}")
    a(f"v_lshlrev_b32 {t1}, 4, {t1}")
    a(f"v_mov_b32 {t2}, 0x3f80")
    a(f"v_lshlrev_b32 {t2}, {t1}, {t2}")
    a(f"v_and_b32 {t1}, 2, {c}")
    a(f"v_cmp_eq_u32 vcc, 0, {t1}")
    a(f"v_cndmask_b32 {t2}, 0, {t2}, vcc")
    for i in range(4):
        a(f"v_cmp_eq_u32 vcc, {i}, {t0}")
        a(f"v_cndmask_b32 {vr(S + i)}, 0, {t2}, vcc")
    a(f"ds_write_b128 {vr(V_L16)}, {vr(S,4)} offset:{L_SEL}")
    a("v_mov_b64 v[120:121], 0")
    a("v_mov_b64 v[122:123], 0")
    for i in range(3):
        a(f"ds_write_b128 {vr(V_SPW)}, v[120:123] offset:{L_OWN + i * 4096}")


def init_handoffs(a):
    a("s_waitcnt lgkmcnt(0)")
    a("v_mov_b64 v[120:121], -1")
    a("v_mov_b64 v[122:123], -1")
    sg = SEG[0]
    a(f"s_mul_i32 s{S_RPC}, s{S_H}, {sg}")
    a(f"s_mul_i32 s{S_T0}, s{S_W}, {32 * sg}")
    a(f"s_add_u32 s{S_RMC}, s{S_RPC}, s{S_T0}")
    a(f"s_add_u32 s{S_RMC}, s{S_RMC}, {hex(RM)}")
    a(f"s_add_u32 s{S_RMO}, s{S_RMC}, 0x4000")
    a(f"s_add_u32 s{S_RPC}, s{S_RPC}, {hex(RP)}")
    a(f"s_mul_i32 s{S_RPL}, s{S_H}, {128 * sg}")
    a(f"s_add_u32 s{S_RPL}, s{S_RPL}, s{S_T0}")
    a(f"s_add_u32 s{S_RPL}, s{S_RPL}, {hex(RP)}")
    a(f"s_add_u32 s{S_T1}, s{S_RPL}, 0x80000")
    for base in (S_RPL, S_T1):
        for i in range(2):
            a(f"buffer_store_dwordx4 v[120:123], {vr(V_L16)}, {sr(SRD_WS,4)}, s{base} offen offset:{i * 16 * sg} sc1")
    for base in (S_RMC, S_RMO):
        a(f"buffer_store_dword v120, {vr(V_MS)}, {sr(SRD_WS,4)}, s{base} offen sc1")
    a(f"s_lshl_b32 s{S_TK}, s{S_W}, 8")
    a(f"s_add_u32 s{S_TK}, s{S_TK}, {hex(TICK)}")
    a(f"s_lshl_b32 s{S_TKH}, s{S_H}, 2")
    a(f"s_add_u32 s{S_TKH}, s{S_TKH}, s{S_TK}")
    a(f"s_mov_b32 s{S_TWO}, 1")
    a(f"s_mov_b32 s{S_TWO + 1}, 1")
    a("v_mov_b32 v126, 0")
    a(f"v_lshrrev_b32 v127, 2, {vr(V_L16)}")
    a(f"s_mov_b64 exec, {sr(S_TWO,2)}")
    a(f"buffer_store_dword v126, v127, {sr(SRD_WS,4)}, s{S_TKH} offen sc1")
    a("s_mov_b64 exec, -1")
    srd(a, SRD_C, P_DBG, 256)
    a(f"s_getreg_b32 s{S_T0}, hwreg(HW_REG_XCC_ID, 0, 4)")
    a(f"s_lshl_b32 s{S_T0}, 1, s{S_T0}")
    a(f"v_mov_b32 v124, s{S_T0}")
    a(f"s_cmp_lg_u32 s{S_W}, 0")
    a("s_cbranch_scc1 L_noxcc")
    a("s_mov_b64 exec, 1")
    a(f"buffer_atomic_or v124, off, {sr(SRD_C,4)}, 0 offset:128")
    a("s_mov_b64 exec, -1")
    a("L_noxcc:")


def load_weights(a, meanwhile, extra, hooks, order, depth):
    chunks = [(m, kk, 0) for m in "qkv" for kk in range(8)] + [("o", kk, tp) for tp in range(4) for kk in range(2)]
    chunks = [c for c in chunks if c not in LDS_SET]
    if order.startswith("rr"):
        per = {m: [c for c in chunks if c[0] == m] for m in "oqkv"}
        chunks = [per[m][i] for i in range(6) for m in order[2:]]
    else:
        chunks = sorted(chunks, key=lambda c: order.index(c[0]))
    chunks += LDS_SET
    ptr = {"q": P_WQ, "k": P_WK, "v": P_WV, "o": P_WO}
    a(f"s_lshl_b32 s{S_T4}, s{S_H}, 8")
    a(f"s_lshl_b32 s{S_T5}, s{S_H}, 17")

    def issue(c):
        m, kk, tp = chunks[c]
        if c == 0 or chunks[c - 1][0] != m:
            srd(a, SRD_A, ptr[m], 512 * 8192)
        for i in range(4):
            a(f"s_add_u32 m0, s{S_W1K}, {L_W + (c % 8) * 16384 + i * 4096}")
            if m == "o":
                a(f"s_add_u32 s{S_T0}, s{S_T5}, {(64 * kk + 16 * i) * 1024 + tp * 256}")
                a(f"buffer_load_dwordx4 v117, {sr(SRD_A,4)}, s{S_T0} offen lds")
            else:
                a(f"s_add_u32 s{S_T0}, s{S_T4}, {(64 * kk + 16 * i) * 8192}")
                a(f"buffer_load_dwordx4 v116, {sr(SRD_A,4)}, s{S_T0} offen lds")

    def dest(c, et):
        m, kk, tp = chunks[c]
        return wreg(m, kk, et, tp)

    def consume(c):
        for et in range(2):
            a(f"v_add_u32 v{114 + et}, {L_W + (c % 8) * 16384}, v{118 + et}")
        for et in range(2):
            k, b = dest(c, et)
            for q in range(4):
                reg = (ar if k == "a" else vr)(b + 2 * q, 2)
                a(f"ds_read_b64_tr_b16 {reg}, v{114 + et} offset:{(32 * (q >> 1) + 2 * (q & 1)) * 256}")

    def writeback(c):
        base = V_WL0 if (c % 8) < 4 else V_WL1
        for i in range(4):
            a(f"ds_write_b128 {vr(base)}, {vr(ST + 16 * (c & 1) + 4 * i, 4)} offset:{(c % 4) * 16384 + i * 1024}")

    def after(c):
        if c % 4 == 0 and TRACE_ON[0] == 1:
            mark(a, 20 + c // 4, 124)
        if c == 7:
            arrive(a, 125)
        if c in hooks:
            hooks[c]()
        if c >= 25:
            writeback(c - 1)

    def throttle():
        L = a.uid("L_thr")
        a(f"s_and_b32 s{S_T0}, s{S_H}, 3")
        a(f"s_cmp_eq_u32 s{S_T0}, 1")
        a(f"s_cbranch_scc1 {L}")
        a(f"s_waitcnt vmcnt({4 * (depth - 1)})")
        a(f"{L}:")

    stage(a, 32, 8, issue, consume, after, meanwhile, extra, throttle if depth else None)
    a("s_barrier")
    writeback(31)


def wl_read(a, dst, slot, et, half):
    base = V_WL0 if slot < 4 else V_WL1
    a(f"ds_read_b128 {vr(dst + 8 * et + 4 * half, 4)}, {vr(base)} offset:{(slot % 4) * 16384 + et * 2048 + half * 1024}")


def wl_chunk(a, dst, slot):
    for et in range(2):
        for half in range(2):
            wl_read(a, dst, slot, et, half)


def kv_poll(a, L, s_seg, vt):
    a(f"v_lshrrev_b32 {vr(vt)}, 2, {vr(V_L16)}")
    a(f"{L}_p:")
    a(f"buffer_load_dword {vr(V_TD)}, {vr(vt)}, {sr(SRD_WS,4)}, s{S_FKO} offen sc1")
    a("s_waitcnt vmcnt(0)")
    a(f"v_cmp_eq_u32 {sr(S_KVM,2)}, 1, {vr(V_TD)}")
    a(f"s_bitcmp1_b64 {sr(S_KVM,2)}, s{s_seg}")
    a(f"s_cbranch_scc1 {L}_ok")
    timeout(a, f"{L}_p")


def fold(pk, d, out, scale=False):
    if pk:
        r = [f"v_pk_add_f32 {vr(d,2)}, {vr(d,2)}, {vr(d + 2, 2)}"]
        if scale:
            r.append(f"v_pk_mul_f32 {vr(d,2)}, {vr(d,2)}, {sr(S_CC,2)}")
    else:
        r = [f"v_add_f32 {vr(d + i)}, {vr(d + i)}, {vr(d + 2 + i)}" for i in range(2)]
        if scale:
            r += [f"v_mul_f32 {vr(d + i)}, s{S_CC}, {vr(d + i)}" for i in range(2)]
    return r + [f"v_cvt_pk_bf16_f32 {vr(out)}, {vr(d)}, {vr(d + 1)}"]


def zip2(x, y):
    return [z for p in zip(x, y) for z in p]


def weave(a, mf, fill, report=None):
    parts = [[l for l in m.split("\n") if l.strip()] for m in mf]
    for x in parts[0][:-1]:
        a(x)
    for i, m in enumerate(parts):
        a(m[-1])
        first, last, written = [], [], set()
        for x in fill.pop(i, []):
            lines = [l for l in x.split("\n") if l.strip()]
            head = lines[0]
            if head.startswith("v_"):
                last.append(x)
                written |= Ins(head).w
            elif not head.startswith(("WAIT", "s_barrier")) and Ins(head).r & written:
                last.append(x)
            elif head.startswith("WAIT") and last and not last[-1].startswith("v_"):
                last.append(x)
            else:
                first.append(x)
        lead = parts[i + 1][:-1] if i + 1 < len(parts) else []
        if any(not x.startswith("v_") for x in last):
            order = first + last + lead
        else:
            order = first + lead + last
        if report is not None:
            report.append((i, len(first) + len(lead), len(last)))
        for x in order:
            a(x)
    assert not fill, fill


def spread(fill, start, items, per=2):
    s = start
    for x in items:
        while len(fill.setdefault(s, [])) >= per:
            s += 1
        fill[s].append(x)
    return s


def smfs(d, x, w):
    return f"v_smfmac_f32_16x16x64_bf16 {vr(d,4)}, {vr(x,4)}, {w}, {vr(V_IDX)}"


def wl_list(dst, slot):
    base = V_WL0 if slot < 4 else V_WL1
    return [f"ds_read_b128 {vr(dst + 4 * i, 4)}, {vr(base)} offset:{(slot % 4) * 16384 + i * 1024}" for i in range(4)]


def cost(x):
    if x.startswith("ds_read_b128"):
        return 10
    if x.startswith("buffer"):
        return 16
    return 4


def timed(a, work, budget):
    while work and budget >= cost(work[0]):
        budget -= cost(work[0])
        a(work.pop(0))
    a.nops(budget)


def check(a, b, t):
    a(f"v_max3_u32 {vr(t)}, {vr(b)}, {vr(b + 1)}, {vr(b + 2)} ; nocheck")
    a(f"v_max3_u32 {vr(t + 1)}, {vr(b + 3)}, {vr(b + 4)}, {vr(b + 5)} ; nocheck")
    a(f"v_max3_u32 {vr(t)}, {vr(t)}, {vr(b + 6)}, {vr(b + 7)} ; nocheck")
    a(f"v_max_u32 {vr(t)}, {vr(t)}, {vr(t + 1)}")
    a(f"v_cmp_eq_u32 vcc, -1, {vr(t)}")


def poll_issue(a, tag, issue, bufs, d, gap, work, first=(), timed_extra=()):
    a.nops(d)
    stamp(a, tag[-2:] + "i")
    for x in first:
        a(x)
    issue(bufs[0])
    events = sorted([(gap * k, b) for k, b in enumerate(bufs) if k] + list(timed_extra), key=lambda e: e[0])
    now, order = 24, []
    for t, e in events:
        timed(a, work, max(0, t - now))
        now = max(now, t)
        if isinstance(e, str):
            a(e)
            now += 8
            order.append(e)
        else:
            issue(e)
            now += 24
            order += [e, e]
    for x in work:
        a(x)
    return order


def pingpong(a, tag, issue, use, sets, again, count=None):
    a(f"{tag}_miss:")
    for k in (0, 1):
        if count:
            a(count)
        if k:
            again(sets[k])
        a("s_mov_b64 exec, vcc")
        issue(sets[k])
        a("s_mov_b64 exec, -1")
        use(sets[1 - k], 2)
        a(f"s_cbranch_vccz {tag}_got")
    timeout(a, f"{tag}_miss")


def kvm_stores():
    return [f"buffer_store_dwordx4 {vr(KA + 4, 4)}, {vr(V_SPW)}, {sr(SRD_WS,4)}, s{S_KMO} offen offset:2048 sc1",
            f"buffer_store_dwordx4 {vr(TMP + 4, 4)}, {vr(V_KMS)}, {sr(SRD_WS,4)}, s{S_KMO} offen sc1"]


def publish_kvm(a):
    for x in kvm_stores():
        a(x)


STAMPS = []
STAMP_OP = ['s_memtime']


def stamp_s(name):
    if TRACE_ON[0] == 1 and name in STAMPS:
        i = STAMPS.index(name)
        if name == "rt":
            return f"s_memrealtime s[{88 + 2 * i}:{89 + 2 * i}]"
        return f"{STAMP_OP[0]} s[{88 + 2 * i}:{89 + 2 * i}]"
    return ""


def stamp(a, name):
    a(stamp_s(name))


def stamp_fold(a):
    if TRACE_ON[0] == 1:
        for i in range(len(STAMPS) - 1):
            a(f"s_sub_u32 s39, s{90 + 2 * i}, s{88 + 2 * i}")
            a(f"s_add_u32 s{28 + i}, s{28 + i}, s39")


def step_loop(a, name, st, P):
    ws = sr(SRD_WS, 4)
    pkq, pkv, pko = P["pkq"], P["pkv"], P["pko"]
    STAMPS[:] = P.get("stamps", ["top", "vend", "owr", "b3", "wo", "h1", "h2"])
    STAMP_OP[0] = "s_memrealtime" if P.get("rt") else "s_memtime"
    cold = []
    PSO = (S_RPC, S_T4, S_T0, S_T5)
    VP, LA, ONE, EX, EM, ZQ = KA + 4, ST + 4, ST, ST + 8, ST + 12, ST + 16
    QP = f"quad_perm:[2,3,0,1] {DPP}"
    memrd = [f"ds_read_b128 {vr(MEM + 4 * kk, 4)}, {vr(V_L16)} offset:{L_MEM + kk * 1024}" for kk in range(8)]
    vmf = lambda kks: [smfs(VA + 4 * et, MEM + 4 * kk, wop("v", kk, et)) for kk in kks for et in range(2)]
    ref1, ref2, ref3 = (wl_list(ST, 2 * g) + wl_list(ST + 16, 2 * g + 1) for g in (1, 2, 3))
    kwrite = f"ds_write2st64_b32 {vr(V_QW)}, {vr(KA + 2)}, {vr(KA + 3)} offset0:{L_K // 256} offset1:{L_K // 256 + 1}"
    kown = [f"v_add_u32 {vr(TMP + 4)}, s{S_KOWN}, {vr(V_TRQ)}",
            f"ds_read_b64_tr_b16 {vr(TMP + 6, 2)}, {vr(TMP + 4)} offset:{L_K + 64}",
            f"ds_read_b64_tr_b16 {vr(TMP + 4, 2)}, {vr(TMP + 4)} offset:{L_K}"]

    a(f"{name}:")
    a.skip = set(P.get("skip", ()))
    a("s_waitcnt lgkmcnt(0)")
    stamp_fold(a)
    a("s_barrier")
    stamp(a, "top")
    ANCHOR = "@top"
    a.anchor(ANCHOR)
    stamp(a, "rt")
    for x in memrd[:8 - len(P["mem_at"])]:
        a(x)
    for k in range(P["busy_top"]):
        a(f"v_mfma_f32_16x16x32_bf16 {vr(MEM + 28, 4)}, {vr(KXF,4)}, {vr(KXF,4)}, 0")
    if P["kv_async"]:
        a(f"s_and_b32 s{S_T0}, s{S_KVM}, s{S_KVM + 1}")
        a(f"s_cmp_eq_u32 s{S_T0}, -1")
        a(f"s_cbranch_scc0 {name}_fl")
        a(f"{name}_fl_done:")
        cold.append(lambda: (a(f"{name}_fl:"), a(f"buffer_load_dword {vr(V_TD)}, {vr(MEM + 28)}, {ws}, s{S_FKO} offen sc1"),
                             a(f"s_branch {name}_fl_done")))
    rmre = f"buffer_store_dword {vr(TMP)}, {vr(V_MS)}, {ws}, s{S_RMO} offen {st}"
    rein = [f"buffer_store_dwordx4 {vr(TMP,4)}, {vr(V_L16)}, {ws}, s{S_T1} offen offset:{i * 16 * SEG[0]} {st}" for i in range(2)]
    vload = [f"buffer_load_dwordx4 {vr(VXF + 4 * et, 4)}, {vr(V_VX)}, {ws}, s{S_KV} offen offset:{VX + et * 256} sc1" for et in range(2)]
    mf, fill = [], {}
    put = lambda sl, *xs: fill.setdefault(sl, []).extend(xs)
    def order(split, kks=range(8)):
        kks = list(kks)
        return [(kk, et) for kk in kks[:split] for et in range(2)] + [(kk, et) for et in range(2) for kk in kks[split:]]
    for kk, et in order(P["q_split"]):
        mf.append((f"WAITL {memrd[kk]}\n" if et == 0 else "") + smfs(QA + 4 * et, MEM + 4 * kk, wop("q", kk, et)))
    for k, sl in enumerate(P["mem_at"]):
        kk = 8 - len(P["mem_at"]) + k
        put(sl, (f"WAITV {ANCHOR}\n" if kk == 4 else "") + memrd[kk])
    for sl, x in zip(P["ref1_at"], ref1):
        put(sl, x)
    for sl, x in zip(P["pub_at"], vload + [rmre] + rein + kvm_stores()[:1]):
        if sl == -1:
            a(x)
        elif sl is not None:
            put(sl, x)
    put(P["kz_at"], f"v_mov_b64 {vr(KA + 4, 2)}, 0")
    put(P["kz_at"] + 1, f"v_mov_b64 {vr(KA + 6, 2)}, 0")
    for sl, n in P["nop_at"]:
        put(sl, f"s_nop {n}")
    cst = [f"v_mov_b64 {vr(ONE,2)}, {sr(S_ONE,2)}", f"v_mov_b64 {vr(ONE + 2, 2)}, {sr(S_ONE,2)}", f"v_mov_b64 {vr(EM,2)}, 0",
           f"v_mov_b32 {vr(EM + 3)}, 0", f"v_mov_b64 {vr(ZQ,2)}, 0", f"v_mov_b64 {vr(ZQ + 2, 2)}, 0"]
    for sl, x in zip(P["cst_at"], cst):
        put(sl, x)

    kmf = [smfs(KA + 4 * et, MEM + 4 * kk, wop("k", kk, et)) for kk in range(8) for et in range(2)]
    sx = P["sx_at"]
    lo = [f"ds_read_b64_tr_b16 {vr(QA + 4 * hi + 2 * jh, 2)}, {vr(V_R2)} offset:{256 * hi + 64 * jh}" for hi in range(2) for jh in range(2)]
    km2 = [(f"WAITL {ref1[4 * (kk - 2) + 2 * et + 1]}\n" if kk in (2, 3) else "") + kmf[2 * kk + et] for kk, et in order(P["k_split"], P["k_order"])]
    mf += km2[:sx]
    mf.append(f"WAITL {lo[1]}\nv_mfma_f32_16x16x32_bf16 {vr(TMP,4)}, {vr(KXF,4)}, {vr(QA,4)}, 0")
    mf.append(f"WAITL {lo[3]}\nv_mfma_f32_16x16x32_bf16 {vr(TMP,4)}, {vr(KXF + 4, 4)}, {vr(QA + 4, 4)}, {vr(TMP,4)}")
    mf += km2[sx:]
    for sl, x in zip(P["ref2_at"], ref2):
        put(sl, x)
    qp = fold(pkq, QA, TMP, True) + fold(pkq, QA + 4, TMP + 1, True)
    qp += [f"ds_write2_b32 {vr(V_W2)}, {vr(TMP)}, {vr(TMP + 1)} offset0:{o} offset1:{o + 32}" for o in (0, 65)] + lo + [
        f"ds_write2st64_b32 {vr(V_QW)}, {vr(TMP)}, {vr(TMP + 1)} offset0:{L_Q // 256} offset1:{L_Q // 256 + 1}"]
    for sl, x in sorted(zip(P["qp_at"], qp), key=lambda t: t[0]):
        put(sl, x)
    n1 = 16 + sx
    n2 = len(mf)
    rest = [(f"WAITL {ref2[4 * (kk - 6) + 2 * et + 1]}\n" if kk > 5 else "") + vmf([kk])[et]
            for kk, et in order(P["v_split"], P["v_order"])]
    for T, sl in enumerate(P["kld_at"]):
        put(sl, f"buffer_load_dwordx4 {vr(KXF + 4 * T, 4)}, {vr(V_VX)}, {ws}, s{S_T2} offen offset:{T * 256} sc1")
    put(P["sp_at"], f"ds_write_b128 {vr(V_SPW)}, {vr(TMP,4)} offset:{L_SP}")
    kp = fold(pkq, KA, KA + 2) + fold(pkq, KA + 4, KA + 3)
    for sl, x in sorted(zip(P["kp_at"], kp + [kwrite]), key=lambda t: t[0]):
        put(sl, x)
    vp = fold(False, VA, VP) + fold(pkv, VA + 4, VP + 2)
    nvp = len(P["vp_at"])
    for sl, x in zip(P["vp_at"], vp):
        put(sl, x)
    bar = P["bar_at"]
    post = [f"ds_read_b128 {vr(MEM + 4 * i, 4)}, {vr(V_L16)} offset:{L_SP + i * 1024}" for i in range(4)]
    post += [f"ds_read_b64_tr_b16 {vr(dst + 4 * ks + 2 * jh, 2)}, {vr(V_TRQ)} offset:{buf + 128 * ks + 64 * jh}"
             for ks in range(2) for jh in range(2) for dst, buf in ((KA, L_K), (QA, L_Q))]
    allpost = list(post)
    l1 = [f"v_add_f32 {vr(MEM + b + r)}, {vr(MEM + b + r)}, {vr(MEM + b + 4 + r)}" for b in (0, 8) for r in range(4)]
    for k, sl in enumerate(P["l1_at"]):
        if k in (0, 4):
            put(sl, f"WAITL {post[1 + k // 2]}")
        put(sl, l1[k])
    put(n2 + bar - P["km_back"], kvm_stores()[1] + f"\ns_add_u32 s{S_KMO}, s{S_KV}, {hex(KM)}")
    put(n2 + bar, f"WAITL {kwrite}\ns_barrier ; nocheck")
    for i in range(len(rest) - 1 - bar):
        take, post = post[:P["post_per"]], post[P["post_per"]:]
        put(n2 + bar + i, *take)
    mf += rest
    for k, nm in ((1, "q0"), (16, "qend"), (n1, "sxpre"), (n2, "kend"), (n2 + bar, "b2pre"), (n2 + bar + 1, "b2post")):
        mf[k] = stamp_s(nm) + "\n" + mf[k]
    weave(a, mf, fill)
    for x in post:
        a(x)
    stamp(a, "vend")
    smm = [f"WAITL {allpost[7]}\nv_mfma_f32_16x16x32_bf16 {vr(TMP + 4, 4)}, {vr(KA,4)}, {vr(QA,4)}, 0",
           f"WAITL {allpost[11]}\nv_mfma_f32_16x16x32_bf16 {vr(TMP + 4, 4)}, {vr(KA + 4, 4)}, {vr(QA + 4, 4)}, {vr(TMP + 4, 4)}"]
    exps = [f"v_exp_f32 {vr(EX + r)}, {vr(TMP + r)}" for r in range(4)]
    p1 = [f"v_pk_add_f32 {vr(MEM + b + h, 2)}, {vr(MEM + b + h, 2)}, {vr(MEM + b + 4 + h, 2)}" for b in (0, 8) for h in (0, 2)]
    p2 = [f"v_pk_add_f32 {vr(TMP + h, 2)}, {vr(MEM + h, 2)}, {vr(MEM + 8 + h, 2)}" for h in (0, 2)]
    a(f"WAITL {allpost[3]}")
    seq = p1[len(P["l1_at"]) // 2:] + p2 + [smm[0], exps[0], smm[1]] + exps[1:]
    for x in seq:
        a(x)
    stamp(a, "sum")
    a(f"v_cvt_pk_bf16_f32 {vr(QA)}, {vr(EX)}, {vr(EX + 1)}")
    a(vp[nvp])
    a(f"v_cvt_pk_bf16_f32 {vr(QA + 1)}, {vr(EX + 2)}, {vr(EX + 3)}")
    for x in vp[nvp + 1:]:
        a(x)
    for j in range(2):
        a(f"v_mov_b32_dpp {vr(QA + 2 + j)}, {vr(QA + j)} {QP}")
    for j in range(2):
        a(f"v_add_f32_dpp {vr(TMP + 4 + j)}, {vr(TMP + 6 + j)}, {vr(TMP + 4 + j)} {QP}")
    stamp(a, "pvpre")
    a(f"WAITV {rmre}".rstrip())
    if P.get("drop"):
        a("s_waitcnt vmcnt(3)")
    stamp(a, "pvgo")

    def pv_x():
        return [f"v_mfma_f32_16x16x32_bf16 {vr(LA,4)}, {vr(ONE,4)}, {vr(QA,4)}, 0",
                f"v_mfma_f32_16x16x32_bf16 {vr(VA,4)}, {vr(VXF,4)}, {vr(QA,4)}, 0",
                f"v_mfma_f32_16x16x32_bf16 {vr(VA + 4, 4)}, {vr(VXF + 4, 4)}, {vr(QA,4)}, 0"]

    def pv_m():
        return [f"v_mfma_f32_16x16x32_bf16 {vr(LA,4)}, {vr(ONE,4)}, {vr(EM + 2, 4)}, {vr(LA,4)}",
                f"v_mfma_f32_16x16x32_bf16 {vr(VA,4)}, {vr(VP,4)}, {vr(EM + 2, 4)}, {vr(VA,4)}",
                f"v_mfma_f32_16x16x32_bf16 {vr(VA + 4, 4)}, {vr(VP,4)}, {vr(EM,4)}, {vr(VA + 4, 4)}"]
    chk = [f"v_max3_f32 {vr(TMP + 6)}, |{vr(TMP)}|, |{vr(TMP + 1)}|, |{vr(TMP + 2)}|",
           f"v_max3_f32 {vr(TMP + 7)}, |{vr(TMP + 3)}|, |{vr(TMP + 4)}|, |{vr(TMP + 5)}|",
           f"v_max_f32 {vr(TMP + 6)}, {vr(TMP + 6)}, {vr(TMP + 7)}",
           f"v_cmp_ngt_f32 vcc, {f32(32.0)}, {vr(TMP + 6)}"]
    weave(a, pv_x() + pv_m(), {
        0: [f"v_exp_f32 {vr(EX)}, {vr(TMP + 4)}"],
        1: [f"v_exp_f32 {vr(EX + 1)}, {vr(TMP + 5)}"],
        2: [f"v_cvt_pk_bf16_f32 {vr(EM + 2)}, {vr(EX)}, {vr(EX + 1)}"] + chk[:2],
        3: chk[2:], 4: [], 5: [f"s_cbranch_vccnz {name}_max" if "skip" not in P else "s_cbranch_execz L_exit"]})
    a(f"{name}_pv:")
    stamp(a, "pvend")

    def true_max():
        m, t = vr(TMP + 6), vr(TMP + 7)
        a(f"{name}_max:")
        for j in range(2):
            a(f"v_mov_b32_dpp {vr(TMP + 4 + j)}, {vr(TMP + 4 + j)} quad_perm:[0,1,0,1] {DPP}")
        a(f"v_max3_f32 {m}, {vr(TMP)}, {vr(TMP + 1)}, {vr(TMP + 2)}")
        a(f"v_max3_f32 {t}, {vr(TMP + 3)}, {vr(TMP + 4)}, {vr(TMP + 5)}")
        a(f"v_max_f32 {m}, {m}, {t}")
        a(f"v_max_f32_dpp {m}, {m}, {m} {QP}")
        for sw in ("v_permlane16_swap_b32", "v_permlane32_swap_b32"):
            a(f"v_mov_b32 {t}, {m}")
            a(f"{sw} {m}, {t}")
            a(f"v_max_f32 {m}, {m}, {t}")
        for r in range(6):
            a(f"v_sub_f32 {vr(TMP + r)}, {vr(TMP + r)}, {m}")
            a(f"v_exp_f32 {vr(TMP + r)}, {vr(TMP + r)}")
        for j in range(2):
            a(f"v_cvt_pk_bf16_f32 {vr(QA + j)}, {vr(TMP + 2 * j)}, {vr(TMP + 2 * j + 1)}")
        a(f"v_cvt_pk_bf16_f32 {vr(EM + 2)}, {vr(TMP + 4)}, {vr(TMP + 5)}")
        for j in range(2):
            a(f"v_mov_b32_dpp {vr(QA + 2 + j)}, {vr(QA + j)} {QP}")
        for x in pv_x() + pv_m():
            a(x)
        a("s_nop 7")
        a(f"s_branch {name}_pv")
    cold.append(true_max)
    a(f"v_rcp_f32 {vr(TMP)}, {vr(LA)}")
    for et in range(2):
        if pkv:
            for j in range(2):
                a(f"v_pk_mul_f32 {vr(VA + 4 * et + 2 * j, 2)}, {vr(VA + 4 * et + 2 * j, 2)}, {vr(TMP,2)} op_sel_hi:[1,0]")
        else:
            for j in range(4):
                a(f"v_mul_f32 {vr(VA + 4 * et + j)}, {vr(VA + 4 * et + j)}, {vr(TMP)}")
        for j in range(2):
            a(f"v_cvt_pk_bf16_f32 {vr(QA + 2 * et + j)}, {vr(VA + 4 * et + 2 * j)}, {vr(VA + 4 * et + 2 * j + 1)}")
        a(f"ds_write_b64 {vr(V_OW)}, {vr(QA + 2 * et, 2)} offset:{256 * et}")
    stamp(a, "owr")
    for h in range(2):
        a(f"v_mfma_f32_32x32x16_bf16 {vr(MEM + 16 * h, 16)}, {vr(ZQ,4)}, {vr(ZQ,4)}, 0")
    rein3 = []
    if P["pub_at"][4] is None and P["rein_end"] < 2:
        a(f"v_mov_b64 {vr(VA,2)}, -1")
        a(f"v_mov_b64 {vr(VA + 2, 2)}, -1")
        rein3 = [f"buffer_store_dwordx4 {vr(VA,4)}, {vr(V_L16)}, {ws}, s{S_T1} offen offset:{16 * SEG[0]} {st}"]
    for tp in range(1, 4):
        if SEG[0] > 64 or tp == 2:
            a(f"s_add_u32 s{PSO[tp]}, s{S_RPC}, {tp * 32 * SEG[0]}")
    busy = lambda d: f"v_mfma_f32_16x16x32_bf16 {vr(d,4)}, {vr(KXF,4)}, {vr(KXF,4)}, 0 ; nocheck"
    for k in range(P["busy_b3"][0]):
        a(busy(VA + 4))
    a("s_waitcnt lgkmcnt(0)")
    a("s_barrier")
    stamp(a, "b3")
    for kk in range(2):
        a(f"ds_read_b128 {vr(QA + 4 * kk, 4)}, {vr(V_L16)} offset:{L_O + kk * 1024}")
    r3 = [ref3[i] for i in (0, 1, 4, 5, 2, 3, 6, 7)]
    for x in rein3 + r3[:P["ref3_pre"]]:
        a(x)
    for k in range(P["busy_b3"][1]):
        a(busy(VA + 4))
    mf, fill = [], {}
    outs = {0: TMP, 1: TMP + 2, 2: KA, 3: KA + 2}

    def wpost(tp):
        o = outs[tp]
        return zip2(fold(pko, MEM + 8 * tp, o), fold(pko, MEM + 8 * tp + 4, o + 1)) + [
            f"buffer_store_dwordx2 {vr(o,2)}, {vr(V_PS)}, {ws}, s{PSO[tp] if SEG[0] > 64 else PSO[tp & 2]} offen offset:{0 if SEG[0] > 64 else (tp & 1) * 2048} {st}"]
    for t in range(8):
        for kk in range(2):
            mf.append(smfs(MEM + 4 * t, QA + 4 * kk, wop("o", kk, t & 1, t >> 1)))
    for kk in range(2):
        mf[kk] = f"WAITL ds_read_b128 {vr(QA + 4 * kk, 4)}, {vr(V_L16)} offset:{L_O + kk * 1024}\n" + mf[kk]
    fill = {2: ["s_nop 0"], 3: ["s_nop 0"]}
    for k, x in enumerate(r3[P["ref3_pre"]:]):
        fill.setdefault(k * P["ref3_step"], []).append(x)
    for k, i in enumerate((1, 5, 3, 7)):
        mf[12 + k] = f"WAITL {ref3[i]}\n" + mf[12 + k]
    tailv = []
    for t in range(8):
        o = outs[t >> 1] + (t & 1)
        ops = fold(False, MEM + 4 * t, o)
        for k, x in enumerate(ops + ([wpost(t >> 1)[-1]] if t & 1 else [])):
            sl = 2 * t + 4 + (0 if k < P["wsplit"] else 1 if k < 3 else 2)
            if sl > 15:
                tailv.append(x)
            else:
                fill.setdefault(sl, []).append(x)
    weave(a, mf, fill)
    for x in tailv:
        a(x)
    stamp(a, "wo")
    a.skip = set()
    H1, SEL, RED, H2B, CT = (MEM, MEM + 16), MEM + 8, MEM + 12, MEM + 16, MEM + 26
    a.idle = {0: None, 1: "sleep", 2: f"v_mfma_f32_16x16x32_bf16 {vr(MEM + 28, 4)}, {vr(KXF,4)}, {vr(KXF,4)}, 0 ; nocheck"}[P["idle"]]
    for w in (3, 2, 1):
        a(f"s_cmp_eq_u32 s{S_W}, {w}")
        a(f"s_cbranch_scc1 {name}_w{w}")
    for w in range(4):
        tag = f"{name}_w{w}"
        a(f"{tag}:")
        selrd = f"ds_read_b128 {vr(SEL,4)}, {vr(V_L16)} offset:{L_SEL}"
        work = [selrd] + kown + wl_list(ST, 0) + wl_list(ST + 16, 1)
        zero = [f"v_mov_b64 {vr(x + 2 * j, 2)}, 0" for x in (QA, VA) for j in range(4)]
        zero += [f"v_mov_b64 {vr(KA + 2 * j, 2)}, 0" for j in range(2)] + [f"v_mov_b64 {vr(TMP + 2 * j, 2)}, -1" for j in range(2)]
        work = work[:4] + zip2(work[4:], zero[:8]) + zero[8:]

        def issue1(b):
            for i in range(2):
                a(f"buffer_load_dwordx4 {vr(b + 4 * i, 4)}, {vr(V_L16)}, {ws}, s{S_RPL} offen offset:{i * 16 * SEG[0]} sc1")

        def use1(b, left):
            if left is not None:
                a(f"s_waitcnt vmcnt({left + 1})")
            a(f"v_mfma_f32_16x16x32_bf16 {vr(RED,4)}, {vr(SEL,4)}, {vr(b,4)}, 0 ; nocheck")
            if left is not None:
                a(f"s_waitcnt vmcnt({left})")
                stamp(a, "h1a")
            a(f"v_mfma_f32_16x16x32_bf16 {vr(RED,4)}, {vr(SEL,4)}, {vr(b + 4, 4)}, {vr(RED,4)} ; nocheck")
            a("s_nop 7")
            for rot in (4, 8):
                for j in range(2):
                    a(f"v_add_f32_dpp {vr(RED + j)}, {vr(RED + j)}, {vr(RED + j)} row_ror:{rot} {DPP}")
                if rot == 4:
                    a(f"v_cmp_u_f32 vcc, {vr(RED + 2)}, {vr(RED + 2)}")
            a(f"v_cvt_pk_bf16_f32 {vr(RED)}, {vr(RED)}, {vr(RED + 1)}")
        n1 = P["n1"][w]
        pace = P["pace"] if st == "" else ()
        TA = MEM + 28
        probe = f"buffer_load_dword {vr(TA + 2)}, {vr(TA)}, {ws}, s{S_TK} offen sc1"
        tick = []
        if pace:
            a(f"v_lshrrev_b32 {vr(TA)}, 2, {vr(V_L16)}")
            a(f"v_mov_b32 {vr(TA + 1)}, s{S_T3}")
            tick = [f"s_mov_b64 exec, {sr(S_TWO,2)}", f"buffer_store_dword {vr(TA + 1)}, {vr(TA)}, {ws}, s{S_TKH} offen", "s_mov_b64 exec, -1"]
        later = poll_issue(a, tag + "_h1", issue1, H1[:n1], max(0, P["d1"][w] - (20 if pace else 0)), P["g1"], work, tick,
                           [(t, probe) for t in pace])
        a(f"WAITL {selrd}")
        use1(H1[0], len(later))
        a(f"s_cbranch_vccnz {tag}_h1_miss")
        a(f"{tag}_h1_got:")

        def true_nan(b, tag=tag):
            check(a, b, CT)
            a(f"s_cbranch_vccz {tag}_h1_got")
        cold.append(lambda tag=tag, issue1=issue1, use1=use1, true_nan=true_nan: pingpong(
            a, tag + "_h1", issue1, use1, H1, true_nan, P.get("count") and "s_add_u32 s100, s100, 1"))
        a(f"buffer_store_dword {vr(RED)}, {vr(V_MS)}, {ws}, s{S_RMO} offen {st}")
        stamp(a, "h1")
        if pace:
            pos = [k for k, e in enumerate(later) if e == probe]
            for k in pos:
                a(f"s_waitcnt vmcnt({len(later) - k})")
                a(f"v_cmp_gt_u32 vcc, s{S_T3}, {vr(TA + 2)} ; nocheck")
                a(f"s_cbranch_vccz {tag}_paced")
                if P.get("count"):
                    a("s_add_u32 s98, s98, 1")
            for k in range(2):
                a(probe)
                a.nops(P["pgap"])
            a(f"{tag}_pace:")
            a(probe)
            a("s_waitcnt vmcnt(2)")
            a(f"v_cmp_gt_u32 vcc, s{S_T3}, {vr(TA + 2)} ; nocheck")
            a(f"s_cbranch_vccz {tag}_paced")
            if P.get("count"):
                a("s_add_u32 s98, s98, 0x100")
            timeout(a, f"{tag}_pace")
            a(f"{tag}_paced:")

        def issue2(b):
            for i in range(2):
                a(f"buffer_load_dwordx4 {vr(b + 4 * i, 4)}, {vr(V_L16)}, {ws}, s{S_RML} offen offset:{i * 16 * SEG[0]} sc1")

        def use2(b, left):
            for i in range(2):
                if left is not None:
                    a(f"s_waitcnt vmcnt({left + 1 - i})")
                a(f"ds_write_b128 {vr(V_MW)}, {vr(b + 4 * i, 4)} offset:{L_MEM + i * 1024} ; nocheck")
            if left is not None:
                stamp(a, "h2a")
                check(a, b, CT)
        work = [f"s_xor_b32 s{S_RPC}, s{S_RPC}, 0x80000", f"s_xor_b32 s{S_RMO}, s{S_RMO}, 0x4000",
                f"s_add_u32 s{S_KV}, s{S_KV}, 0x8000", f"s_add_u32 s{S_S}, s{S_S}, 1", f"s_mov_b32 s{S_T1}, s{S_RPL}", f"s_xor_b32 s{S_RPL}, s{S_RPL}, 0x80000",
                *([f"v_cmp_eq_u32 {sr(S_KVM,2)}, 1, {vr(V_TD)}", f"v_lshrrev_b32 {vr(MEM + 28)}, 2, {vr(V_L16)}"] if P["kv_async"] else []),
                f"s_add_u32 s{S_T3}, s{S_S}, 1", f"s_add_u32 s{S_T2}, s{S_KV}, 0x8000", f"s_min_u32 s{S_T3}, s{S_T3}, 63",
                f"s_bitcmp1_b64 {sr(S_KVM,2)}, s{S_T3}\ns_cbranch_scc0 {tag}_kv\n{tag}_kv_ok:"]
        cold.append(lambda tag=tag: (a(f"{tag}_kv:"), kv_poll(a, tag + "_kv", S_T3, CT)))
        n2 = P["n2"][w]
        H2 = (H2B, VXF) if n2 == 2 else (VXF,)
        poll_issue(a, tag + "_h2", issue2, H2, P["d2"][w], P["g2"], work)
        use2(H2[0], 2 * (n2 - 1))
        a(f"s_cbranch_vccnz {tag}_h2_miss")
        a(f"{tag}_h2_got:")

        cold.append(lambda tag=tag, issue2=issue2, use2=use2, H2=H2: pingpong(
            a, tag + "_h2", issue2, use2, H2, lambda b: None, P.get("count") and "s_add_u32 s100, s100, 0x10000"))
        stamp(a, "h2")
        if P["rein_end"]:
            for x in rein[:P["rein_end"]]:
                a(x)
        stamp(a, "pub")
        if P.get("series"):
            a("s_waitcnt lgkmcnt(0)")
            a(f"s_lshl_b32 s38, s2, 2")
            a(f"s_add_u32 s38, s38, {w}")
            a("s_lshl_b32 s38, s38, 11")
            a(f"s_lshl_b32 s37, s{S_S}, 5")
            a("s_add_u32 s38, s38, s37")
            a(f"s_add_u32 s38, s38, {hex(TRACE + 0x100000 - 32)}")
            for i in range(7):
                a(f"v_mov_b32 {vr(MEM + 16 + i)}, s{88 + 2 * i}")
            a(f"v_mov_b32 {vr(MEM + 23)}, s{S_TO}")
            if P.get("count"):
                a("s_mov_b32 s100, 0")
                a("s_mov_b32 s98, 0")
            a("s_mov_b64 exec, 1")
            a(f"buffer_store_dwordx4 {vr(MEM + 16, 4)}, off, {ws}, s38")
            a(f"buffer_store_dwordx4 {vr(MEM + 20, 4)}, off, {ws}, s38 offset:16")
            a("s_mov_b64 exec, -1")
        a(f"s_xor_b32 s{S_RML}, s{S_RML}, 0x4000")
        a(f"s_cmp_lt_u32 s{S_S}, {P.get('steps', 63)}")
        a(f"s_cbranch_scc1 {name}")
        a(f"s_branch {name}_last")
    a.idle = None
    for f in cold:
        f()
    a(f"{name}_last:")
    a("s_waitcnt lgkmcnt(0)")
    a("s_barrier")
    mark(a, 3, QA)
    a("s_waitcnt vmcnt(0)")
    for x in memrd:
        a(x)
    publish_kvm(a)
    a(f"s_add_u32 s{S_KMO}, s{S_KV}, {hex(KM)}")
    a(f"v_mov_b64 {vr(KA + 4, 2)}, 0")
    a(f"v_mov_b64 {vr(KA + 6, 2)}, 0")
    for x in ref1:
        a(x)
    for kk in (0, 1, 4, 5, 6, 7, 2, 3):
        a(f"WAITL {memrd[kk] if kk not in (2, 3) else ref1[4 * (kk - 2) + 3]}")
        for x in kmf[2 * kk:2 * kk + 2]:
            a(x)
    vm6 = vmf(range(6))
    weave(a, vm6, {0: ref2[:2], 1: ref2[2:4], 2: ref2[4:6], 3: ref2[6:] + kp[:1], 4: kp[1:3], 5: kp[3:5], 6: kp[5:], 7: [kwrite, kown[0]], 8: kown[1:]})
    a(f"WAITL {ref2[7]}")
    for x in vmf([6, 7]):
        a(x)
    a("s_waitcnt lgkmcnt(0)")
    a(kvm_stores()[1])
    for x in vp:
        a(x)
    a(kvm_stores()[0])
    mark(a, 4, QA)
    for i in range(6):
        mark(a, 8 + i, QA, 28 + i)
    mark(a, 14, QA, S_TO)
    if TRACE_ON[0] == 1:
        a("s_memtime s[36:37]")
        a("s_waitcnt lgkmcnt(0)")
        a("s_sub_u32 s36, s36, s34")
        mark(a, 15, QA, 36)
    a("s_branch L_exit")


def recurrence(a, P):
    SEG[0] = P["seg"]
    NOSW[0] = P.get("nosw", 0)
    a("L_recur:")
    a(f"s_lshr_b32 s{S_H}, s2, 3")
    if P.get("h_xor"):
        a(f"s_xor_b32 s{S_H}, s{S_H}, {P['h_xor']}")
    mark(a, 0, 100)
    for i in range(8):
        if TRACE_ON[0] == 1:
            a(f"s_mov_b32 s{28 + i}, 0")
    if P.get("r_exit"):
        a("s_branch L_exit")
    lane_ids(a)
    setup_staging(a)

    def meanwhile():
        setup(a)
        init_handoffs(a)
        srd(a, SRD_B, P_MEM0, 8 * 1024)
        a(f"v_lshrrev_b32 v100, 4, {vr(V_SPW)}")
        a("v_bfe_u32 v101, v100, 2, 2")
        a("v_and_b32 v102, 1, v100")
        a("v_lshl_add_u32 v101, v101, 1, v102")
        a("v_bfe_u32 v102, v100, 1, 1")
        a("v_lshrrev_b32 v100, 4, v100")
        a("v_lshl_add_u32 v100, v100, 1, v102")
        a("v_lshlrev_b32 v100, 4, v100")
        a("v_lshl_add_u32 v100, v101, 10, v100")
        for i in range(2):
            a(f"buffer_load_dwordx4 {vr(QA + 4 * i, 4)}, v100, {sr(SRD_B,4)}, 0 offen offset:{i * 512}")

    def ask_arrival():
        a(f"s_mov_b32 s{S_S}, 0")
        a(f"s_lshl_b32 s{S_KV}, s{S_H}, 21")
        a(f"s_mov_b32 s{S_KMO}, {hex(OOB)}")
        a(f"s_lshl_b32 s{S_FKO}, s{S_H}, 10")
        a(f"s_lshl_b32 s{S_T0}, s{S_W}, 8")
        a(f"s_add_u32 s{S_FKO}, s{S_FKO}, s{S_T0}")
        a(f"s_add_u32 s{S_FKO}, s{S_FKO}, {hex(FKV)}")
        a(f"buffer_load_dword v100, off, {sr(SRD_C,4)}, 0 sc1")

    def ask_flags():
        a(f"v_readfirstlane_b32 s{S_T0}, v100")
        a(f"s_cmp_ge_u32 s{S_T0}, 256")
        a("s_cbranch_scc1 L_rarr")
        wait_all_arrived(a, 100)
        a("L_rarr:")
        a(f"buffer_load_dword v100, off, {sr(SRD_C,4)}, 0 offset:128 sc1")
        a(f"v_lshrrev_b32 v101, 2, {vr(V_L16)}")
        a(f"buffer_load_dword {vr(V_TD)}, v101, {sr(SRD_WS,4)}, s{S_FKO} offen sc1")

    def ask_keys():
        a(f"v_cmp_eq_u32 {sr(S_KVM,2)}, 1, {vr(V_TD)}")
        a(f"s_bitcmp1_b64 {sr(S_KVM,2)}, s{S_S}")
        a("s_cbranch_scc1 L_kv0_ok")
        kv_poll(a, "L_kv0", S_S, 101)
        a("L_kv0_ok:")
        a(f"s_mov_b32 s{S_T3}, 1")
        a(f"s_bitcmp1_b64 {sr(S_KVM,2)}, s{S_T3}")
        a("s_cbranch_scc1 L_kv1_ok")
        kv_poll(a, "L_kv1", S_T3, 101)
        a("L_kv1_ok:")
        for T in range(2):
            a(f"buffer_load_dwordx4 {vr(KXF + 4 * T, 4)}, {vr(V_VX)}, {sr(SRD_WS,4)}, s{S_KV} offen offset:{T * 256} sc1")

    load_weights(a, meanwhile, 9, {P["ask_at"]: ask_arrival, P["ask_at"] + 8: ask_flags, P["free_at"]: lambda: arrive(a, 125, 64), 31: ask_keys if not P.get('f_none') else (lambda: (mark(a, 1, 104), a('s_branch L_exit')))}, P['w_order'], P['w_depth'])
    for i in range(2):
        a(f"ds_write_b128 {vr(V_SPW)}, {vr(QA + 4 * i, 4)} offset:{L_MEM + i * 4096}")
    mark(a, 1, 104)
    a(f"v_readfirstlane_b32 s{S_T4}, v100")
    a(f"s_mov_b32 s{S_ONE}, 0x3f803f80")
    a(f"s_mov_b32 s{S_ONE + 1}, 0x3f803f80")
    a(f"s_mov_b32 s{S_CC}, {C_EXP}")
    a(f"s_mov_b32 s{S_CC + 1}, {C_EXP}")
    a(f"s_mul_i32 s{S_RML}, s{S_W}, {32 * SEG[0]}")
    a(f"s_add_u32 s{S_RML}, s{S_RML}, {hex(RM + 0x4000)}")
    if P["kv_async"]:
        a(f"v_lshrrev_b32 {vr(MEM + 28)}, 2, {vr(V_L16)}")
    else:
        a(f"s_and_b32 s{S_KVM}, s{S_KVM}, {hex((1 << P['kv_again']) - 1)}")
        a(f"s_mov_b32 s{S_KVM + 1}, 0")
    a("s_waitcnt lgkmcnt(0)")
    wl_chunk(a, ST, 0)
    wl_chunk(a, ST + 16, 1)
    for j in range(12):
        a(f"v_mov_b64 {vr(QA + 2 * j, 2)}, 0")
    a(f"v_mov_b64 {vr(TMP,2)}, -1")
    a(f"v_mov_b64 {vr(TMP + 2, 2)}, -1")
    a(f"s_xor_b32 s{S_T1}, s{S_RPL}, 0x80000")
    a(f"s_add_u32 s{S_T2}, s{S_KV}, 0x8000")
    a("s_waitcnt vmcnt(0) lgkmcnt(0)")
    mark(a, 2, 100)
    if TRACE_ON[0] == 1:
        a("s_memtime s[34:35]")
        for i in range(7):
            a(f"s_mov_b32 s{88 + 2 * i}, 0")
    a(f"s_bcnt1_i32_b32 s{S_T4}, s{S_T4}")
    a(f"s_cmp_eq_u32 s{S_T4}, 1")
    if P.get("force_slow"):
        a("s_branch L_rslow")
    a("s_cbranch_scc0 L_rslow")
    step_loop(a, "L_rfast", "", P)
    step_loop(a, "L_rslow", "sc1", P)
```

```python
import sys
from asmlib import Asm, vr, ar, sr
from common import *
from follower import follower
from recur import *

DEFAULT = dict(d1=(60, 100, 160, 220), n1=(2,) * 4, g1=140, d2=(200, 180, 200, 180), n2=(2,) * 4, g2=140, pkq=0, pkv=1, pko=0,
               mem_at=(0, 1, 3, 4, 5, 6), ref1_at=(7, 8, 19, 20, 10, 11, 21, 22), pub_at=(-1, 2, 12, 15, None, 9),
               rein_end=0, pace=(), pgap=40, seg=64, far_sleep=2, far_one=0, yield_to=32, free_at=24, f1_slots=7, idle=0, code_warm=0, code_wait=0, spec_km=0, far_op='atomic', last_wait=0, near_sleep=(0, 0), prompt=1, f_slots=3, f3_window=0, busy_b3=(0, 0), busy_h=(0, 0), busy_top=0, kz_at=19, q_split=4, k_split=0, v_split=4,
               vp_at=(48, 49), l1_at=(), k_order=(0, 1, 4, 5, 6, 7, 2, 3), v_order=(0, 1, 2, 3, 6, 7, 4, 5),
               nop_at=((16, 1), (17, 1), (32, 0)),
               qp_at=(16, 17, 18, 19, 20, 18, 20, 20, 21, 22, 23, 24, 25, 26, 27, 28, 29),
               sx_at=16, ref2_at=(30, 31, 33, 34, 32, 35, 38, 39), kld_at=(36, 43), sp_at=36,
               kp_at=(27, 28, 30, 33, 34, 35, 37), cst_at=(44, 45, 46, 47, 48, 49), bar_at=6, kv_again=7, kv_async=0, ask_at=14,
               w_order='oqkv', w_depth=0, post_per=1, wsplit=1, km_back=3, ref3_pre=1, ref3_step=1)


def build(P, verbose=False, check=True):
    a = Asm()
    TRACE_ON[0] = int(P.get('trace', 0))
    TRACE_ON[1] = P.get('f3marks')
    a("L_entry:")
    a("s_cmp_ge_u32 s2, 256")
    a("s_cbranch_scc1 L_exit")
    a("s_load_dwordx16 s[40:55], s[0:1], 0")
    a("s_load_dwordx8 s[56:63], s[0:1], 64")
    a("s_load_dwordx4 s[64:67], s[0:1], 96")
    a("s_load_dwordx2 s[68:69], s[0:1], 112")
    if P["code_warm"]:
        a("s_getpc_b64 s[30:31]")
        a("s_and_b32 s30, s30, 0xffffff00")
        a("v_lshlrev_b32 v2, 7, v0")
        for k in range(P["code_warm"]):
            a(f"global_load_dword v{250 + k}, v2, s[30:31]")
            if k + 1 < P["code_warm"]:
                a("v_add_u32 v2, 0x8000, v2")
                a("v_min_u32 v2, L_exit-L_entry, v2")
    a("v_lshrrev_b32 v1, 6, v0")
    a(f"v_readfirstlane_b32 s{S_W}, v1")
    a(f"s_mov_b32 s{S_TO}, 0")
    a("s_waitcnt lgkmcnt(0)")
    srd(a, SRD_WS, P_WS, WS_BYTES)
    if P["code_warm"] and P["code_wait"]:
        a("s_waitcnt vmcnt(0)")
    a(f"s_and_b32 s{S_T0}, s2, 7")
    a(f"s_cmp_lg_u32 s{S_T0}, 0")
    a("s_cbranch_scc1 L_follower")
    recurrence(a, P)
    follower(a, P)
    a("L_exit:")
    a("s_endpgm")
    if P.get("drop"):
        import re
        inside, keep = False, []
        for k, x in a.items:
            if k == "label" and x == "L_rfast":
                inside = True
            if k == "label" and x == "L_rfast_w0":
                inside = False
            if inside and k == "ins" and any(re.search(p, x.text) for p in P["drop"]):
                continue
            keep.append((k, x))
        a.items = keep
    if P.get("fdrop"):
        import re
        inside, keep = False, []
        for k, x in a.items:
            if k == "label" and x == "L_f3":
                inside = True
            if inside and k == "ins" and any(re.search(p, x.text) for p in P["fdrop"]):
                continue
            keep.append((k, x))
        a.items = keep
    n = a.pad_hazards(verbose)
    probs = a.check_waits() if check else []
    for p in probs:
        print("WAIT:", p)
    if P.get("strict") and any("counted lgkm" not in p for p in probs):
        raise ValueError("wait check failed")
    if P.get("align", 1):
        a.align8()
    print(f"instructions: {a.count()}, hazard pad states: {n}")
    ref = open(f"cdna_kernels/{NAME}.s.ref").read().split("\n")
    head = [l for l in ref if l.startswith(";") and "@launch" not in l and not l.startswith("    ")]
    out = "\n".join(head) + "\n; @launch grid=(256,1,1) block=(256,1,1) lds=163840\n"
    out += f'.amdgcn_target "amdgcn-amd-amdhsa--gfx950"\n.text\n.globl {NAME}_kernel\n.p2align 8\n.type {NAME}_kernel,@function\n{NAME}_kernel:\n'
    out += a.text()
    out += f'''.section .rodata,"a"
.p2align 6
.amdhsa_kernel {NAME}_kernel
  .amdhsa_next_free_vgpr 512
  .amdhsa_next_free_sgpr 102
  .amdhsa_accum_offset 256
  .amdhsa_group_segment_fixed_size 0
  .amdhsa_kernarg_size 120
  .amdhsa_user_sgpr_count 2
  .amdhsa_user_sgpr_kernarg_segment_ptr 1
  .amdhsa_system_sgpr_workgroup_id_x 1
  .amdhsa_float_denorm_mode_32 3
.end_amdhsa_kernel
'''
    return out


if __name__ == "__main__":
    P = dict(DEFAULT)
    path = f"cdna_kernels/{NAME}.s"
    verbose = False
    for arg in sys.argv[1:]:
        if arg == "-v":
            verbose = True
        elif arg.startswith("out="):
            path = arg[4:]
        else:
            k, v = arg.split("=")
            P[k] = eval(v)
    open(path, "w").write(build(P, verbose))
```

```python
from asmlib import vr, ar, sr
from common import *

XB, XSTR = 0, 33280
GB = 0x10400
STG = 0x10C00
S_SEG, S_NSEG, S_I, S_XCUR, S_W1K, S_OFF, S_FFN, S_XN = 28, 29, 30, 31, 32, 33, 34, 35
S_MASK = 70

V_LANE, V_L16, V_L16W, V_DMA, V_TR, V_XF, V_XC, V_GU0, V_GU1, V_TRG, V_T0, V_T1, V_T2, V_T3, V_FL, V_G = range(1, 17)
V_XG, V_GC, V_KM, V_VM, V_RD, V_OUT, V_KP = range(17, 24)
XF = 24
GW = 96
T0, T1 = 64, 80
PK = 40
SENT = 56


def lane_setup(a):
    l = vr(V_LANE)
    a(f"v_and_b32 {l}, 63, v0")
    a(f"v_lshlrev_b32 {vr(V_L16)}, 4, {l}")
    a(f"s_lshl_b32 s{S_W1K}, s{S_W}, 10")
    a(f"v_add_u32 {vr(V_L16W)}, s{S_W1K}, {vr(V_L16)}")
    t0, t1, t2, t3 = (vr(x) for x in (V_T0, V_T1, V_T2, V_T3))
    a(f"v_lshrrev_b32 {t0}, 4, {l}")
    a(f"v_and_b32 {t1}, 15, {l}")
    a(f"v_lshlrev_b32 {t2}, 2, {t0}")
    a(f"v_xor_b32 {t1}, {t1}, {t2}")
    a(f"v_lshlrev_b32 {t1}, 4, {t1}")
    a(f"s_lshl_b32 s{S_T0}, s{S_W}, 2")
    a(f"v_add_u32 {t0}, s{S_T0}, {t0}")
    a(f"v_lshl_add_u32 {vr(V_DMA)}, {t0}, 13, {t1}")
    a(f"v_bfe_u32 {t0}, {l}, 2, 2")
    a(f"v_bfe_u32 {t1}, {l}, 4, 1")
    a(f"v_bfe_u32 {t2}, {l}, 1, 1")
    a(f"v_lshl_add_u32 {t3}, {t1}, 1, {t2}")
    a(f"v_add_u32 {t3}, s{S_T0}, {t3}")
    a(f"v_lshlrev_b32 {vr(V_TR)}, 2, {t0}")
    a(f"v_xor_b32 {t3}, {t3}, {vr(V_TR)}")
    a(f"v_lshlrev_b32 {t3}, 4, {t3}")
    a(f"v_lshrrev_b32 {vr(V_TR)}, 5, {l}")
    a(f"v_lshl_add_u32 {vr(V_TR)}, {vr(V_TR)}, 3, {t0}")
    a(f"v_lshl_add_u32 {vr(V_TR)}, {vr(V_TR)}, 8, {t3}")
    a(f"v_and_b32 {t3}, 1, {l}")
    a(f"v_lshl_add_u32 {vr(V_TR)}, {t3}, 3, {vr(V_TR)}")
    a(f"s_lshl_b32 s{S_T1}, s{S_W}, 1")
    a(f"v_add_u32 {t2}, s{S_T1}, {t2}")
    a(f"v_lshrrev_b32 {vr(V_TRG)}, 1, {t0}")
    a(f"v_lshl_add_u32 {vr(V_TRG)}, {t1}, 1, {vr(V_TRG)}")
    a(f"v_lshlrev_b32 {vr(V_TRG)}, 1, {vr(V_TRG)}")
    a(f"v_xor_b32 {t2}, {t2}, {vr(V_TRG)}")
    a(f"v_lshlrev_b32 {t2}, 4, {t2}")
    a(f"v_lshl_add_u32 {t2}, {t3}, 3, {t2}")
    a(f"v_lshl_add_u32 {t2}, {t1}, 13, {t2}")
    a(f"v_lshrrev_b32 {vr(V_TRG)}, 5, {l}")
    a(f"v_lshl_add_u32 {vr(V_TRG)}, {vr(V_TRG)}, 3, {t0}")
    a(f"v_lshl_add_u32 {vr(V_TRG)}, {vr(V_TRG)}, 7, {t2}")
    a(f"v_lshrrev_b32 {t0}, 3, {l}")
    a(f"s_lshl_b32 s{S_T1}, s{S_W}, 3")
    a(f"v_add_u32 {t0}, s{S_T1}, {t0}")
    a(f"v_mul_u32_u24 {t0}, 3584, {t0}")
    a(f"v_and_b32 {t2}, 7, {l}")
    a(f"v_lshlrev_b32 {t1}, 1, {t1}")
    a(f"v_xor_b32 {t2}, {t2}, {t1}")
    a(f"v_lshl_add_u32 {vr(V_GU0)}, {t2}, 4, {t0}")
    a(f"v_xor_b32 {t2}, 4, {t2}")
    a(f"v_lshl_add_u32 {vr(V_GU1)}, {t2}, 4, {t0}")
    a(f"v_and_b32 {t0}, 31, {l}")
    a(f"v_mul_u32_u24 {t0}, 1040, {t0}")
    a(f"v_lshrrev_b32 {t1}, 5, {l}")
    a(f"v_lshl_add_u32 {vr(V_XF)}, {t1}, 4, {t0}")
    a(f"v_bfe_u32 {t0}, {l}, 3, 1")
    a(f"v_bfe_u32 {t1}, {l}, 4, 1")
    a(f"v_and_b32 {t2}, 0x27, {l}")
    a(f"v_lshl_add_u32 {t2}, {t0}, 4, {t2}")
    a(f"v_lshl_add_u32 {t2}, {t1}, 3, {t2}")
    a(f"v_lshlrev_b32 {vr(V_KP)}, 4, {t2}")
    a(f"v_lshrrev_b32 {t0}, 3, v0")
    a(f"v_mul_u32_u24 {t0}, 1040, {t0}")
    a(f"v_and_b32 {t1}, 7, v0")
    a(f"v_lshl_add_u32 {vr(V_XG)}, {t1}, 4, {t0}")
    a(f"v_cmp_eq_u32 vcc, 0, {l}")
    a(f"v_mov_b32 {t0}, {hex(OOB)}")
    a(f"v_cndmask_b32 {vr(V_FL)}, {t0}, {l}, vcc")


def x_dma_list(s_src, s_dst):
    return [f"s_add_u32 m0, s{s_dst}, {4 * i * 1040}\ns_add_u32 s{S_T2}, s{s_src}, {4 * i * 1024}\n"
            f"buffer_load_dwordx4 {vr(V_L16W)}, {sr(SRD_C,4)}, s{S_T2} offen lds" for i in range(8)]


def x_first(a):
    a(f"s_lshl_b32 s{S_T0}, s{S_SUB}, 15")
    a(f"s_mul_i32 s{S_T1}, s{S_W}, 1040")
    for x in x_dma_list(S_T0, S_T1):
        a(x)


def issue256(a, srdreg, kk, slot):
    for i in range(4):
        a(f"s_add_u32 m0, s{S_W1K}, {slot + i * 4096}")
        a(f"s_add_u32 s{S_T0}, s{S_OFF}, {(64 * kk + 16 * i) * 8192}")
        a(f"buffer_load_dwordx4 {vr(V_DMA)}, {sr(srdreg,4)}, s{S_T0} offen lds")


def consume256(a, base, kk, slot):
    a(f"v_add_u32 {vr(V_T0)}, {slot}, {vr(V_TR)}")
    for tt in range(4):
        for jh in range(2):
            a(f"ds_read_b64_tr_b16 {ar(base + (4 * kk + tt) * 4 + 2 * jh, 2)}, {vr(V_T0)} offset:{tt * 4096 + jh * 1024}")


S_PREV, S_PFL, S_XS, S_XD, S_PQ = 70, 71, 72, 73, 74


def block_offsets(a):
    a(f"s_lshl_b32 s{S_T0}, s{S_H}, 6")
    a(f"s_add_u32 s{S_T0}, s{S_T0}, s{S_SEG}")
    a(f"s_lshl_b32 s{S_PREV}, s{S_T0}, 15")
    a(f"s_lshl_b32 s{S_PQ}, s{S_T0}, 13")
    a(f"s_add_u32 s{S_PQ}, s{S_PQ}, {hex(QX)}")
    a(f"s_lshl_b32 s{S_T0}, s{S_H}, 10")
    a(f"s_lshl_b32 s{S_T1}, s{S_W}, 8")
    a(f"s_add_u32 s{S_T0}, s{S_T0}, s{S_T1}")
    a(f"s_lshl_b32 s{S_T1}, s{S_SEG}, 2")
    a(f"s_add_u32 s{S_T0}, s{S_T0}, s{S_T1}")
    a(f"s_add_u32 s{S_PFL}, s{S_T0}, {hex(FKV)}")


def seg_loop(a, name, second_is_v, fill, finish, younger, two_variants=False):
    a(f"s_mov_b32 s{S_I}, 0")
    a(f"s_mov_b32 s{S_SEG}, s{S_SUB}")
    a(f"s_mov_b32 s{S_XCUR}, {XB}")
    for r in (S_PREV, S_PQ, S_PFL):
        a(f"s_mov_b32 s{r}, {hex(OOB)}")
    a(f"{name}:")
    a(f"s_add_u32 s{S_XS}, s{S_SEG}, 7")
    a(f"s_min_u32 s{S_XS}, s{S_XS}, 63")
    a(f"s_lshl_b32 s{S_XS}, s{S_XS}, 15")
    a(f"s_sub_u32 s{S_XN}, {XSTR}, s{S_XCUR}")
    a(f"s_mul_i32 s{S_XD}, s{S_W}, 1040")
    a(f"s_add_u32 s{S_XD}, s{S_XD}, s{S_XN}")
    a(f"v_add_u32 {vr(V_XC)}, s{S_XCUR}, {vr(V_XF)}")
    a(f"s_waitcnt vmcnt({younger})")
    a("s_barrier")
    rd = [f"ds_read_b128 {vr(XF + 4 * (t % 4), 4)}, {vr(V_XC)} offset:{t * 32}" for t in range(32)]

    def body(with_second):
        for t in range(3):
            a(rd[t])
        f = fill()
        for k, x in enumerate(x_dma_list(S_XS, S_XD)):
            f.setdefault(2 * k + 1, []).insert(0, x)
        for t in range(32):
            if t + 3 < 32:
                a(rd[t + 3])
            a(f"WAITL {rd[t]}")
            x = vr(XF + 4 * (t % 4), 4)
            c0 = "0" if t == 0 else vr(T0, 16)
            c1 = "0" if t == 0 else vr(T1, 16)
            a(f"v_mfma_f32_32x32x16_bf16 {vr(T0,16)}, {ar(4 * t, 4)}, {x}, {c0}")
            for y in f.pop(2 * t, []):
                a(y)
            if with_second:
                if second_is_v:
                    a(f"v_mfma_f32_32x32x16_bf16 {vr(T1,16)}, {x}, {ar(128 + 4 * t, 4)}, {c1}")
                else:
                    a(f"v_mfma_f32_32x32x16_bf16 {vr(T1,16)}, {ar(128 + 4 * t, 4)}, {x}, {c1}")
            for y in f.pop(2 * t + 1, []):
                a(y)
        assert not f, f

    if two_variants:
        a(f"s_cmp_eq_u32 s{S_FFN}, 0")
        a(f"s_cbranch_scc1 {name}_noffn")
        body(True)
        a(f"s_branch {name}_join")
        a(f"{name}_noffn:")
        body(False)
        a(f"{name}_join:")
    else:
        body(True)
    block_offsets(a)
    a(f"s_mov_b32 s{S_XCUR}, s{S_XN}")
    a(f"s_add_u32 s{S_SEG}, s{S_SEG}, 7")
    a(f"s_add_u32 s{S_I}, s{S_I}, 1")
    finish()
    a(f"s_cmp_lt_u32 s{S_I}, s{S_NSEG}")
    a(f"s_cbranch_scc1 {name}")


def pack(a, acc, dst):
    for j in range(8):
        a(f"v_cvt_pk_bf16_f32 {vr(dst + j)}, {vr(acc + 2 * j)}, {vr(acc + 2 * j + 1)}")


def place(f, start, items, per):
    for k, x in enumerate(items):
        f.setdefault(start + k // per, []).append(x)


def phase1a(a, meanwhile, extra, P):
    srd(a, SRD_A, P_WK, 512 * 8192)
    srd(a, SRD_B, P_WV, 512 * 8192)
    a(f"s_lshl_b32 s{S_OFF}, s{S_H}, 8")

    def after(c):
        if c == P["f1_slots"] - 1:
            arrive(a, V_T1)
            srd(a, SRD_C, P_X, 2048 * 1024)

    N1 = P["f1_slots"]
    stage(a, 16, N1,
          lambda c: issue256(a, SRD_A if c < 8 else SRD_B, c % 8, XSTR + (c % N1) * 16384),
          lambda c: consume256(a, 0 if c < 8 else 128, c % 8, XSTR + (c % N1) * 16384), after, meanwhile, extra)

    mark(a, 1, V_T0, dbg_base=6)

    ws = sr(SRD_WS, 4)
    a(f"v_mov_b64 {vr(SENT,2)}, -1")
    a(f"v_mov_b64 {vr(SENT + 2, 2)}, -1")
    a(f"s_lshr_b32 s{S_T0}, s{S_W1K}, 1")
    a(f"v_add_u32 {vr(V_T0)}, s{S_T0}, {vr(V_L16)}")
    a(f"v_mov_b32 {vr(V_T1)}, {hex(OOB)}")
    a(f"v_cmp_gt_u32 vcc, 32, {vr(V_LANE)}")
    a(f"v_cndmask_b32 {vr(V_KM)}, {vr(V_T1)}, {vr(V_T0)}, vcc")
    a(f"s_lshl_b32 s{S_T0}, s{S_W}, 12")
    a(f"v_add_u32 {vr(V_VM)}, s{S_T0}, {vr(V_L16)}")
    a(f"v_add_u32 {vr(V_RD)}, s{S_T0}, {vr(V_KP)}")
    a(f"v_mov_b32 {vr(V_G)}, 1")
    st = [f"buffer_store_dwordx4 {vr(PK + 4 * bb, 4)}, {vr(V_RD)}, {ws}, s{S_PREV} offen offset:{KX + bb * 1024} sc1" for bb in range(2)]
    st += [f"buffer_store_dwordx4 {vr(PK + 8 + 4 * bb, 4)}, {vr(V_VM)}, {ws}, s{S_PREV} offen offset:{VX + bb * 1024} sc1" for bb in range(2)]
    st += [f"s_add_u32 s{S_T3}, s{S_PREV}, {hex(KM)}\nbuffer_store_dwordx4 {vr(SENT,4)}, {vr(V_KM)}, {ws}, s{S_T3} offen sc1",
           f"buffer_store_dwordx4 {vr(SENT,4)}, {vr(V_L16W)}, {ws}, s{S_T3} offen offset:2048 sc1"]
    flag = f"s_waitcnt vmcnt(0)\nbuffer_store_dword {vr(V_G)}, {vr(V_FL)}, {ws}, s{S_PFL} offen sc1"

    def fill():
        f = {17 + 2 * k: [x] for k, x in enumerate(st)}
        f[62] = [flag]
        return f

    def finish():
        pack(a, T0, PK)
        pack(a, T1, PK + 8)
        if P["prompt"]:
            a(f"s_cmp_gt_u32 s{S_I}, {P['prompt']}")
            a("s_cbranch_scc1 L_f1a_lazy")
            for x in st + [flag]:
                a(x)
            a(f"s_mov_b32 s{S_PREV}, {hex(OOB)}")
            a(f"s_mov_b32 s{S_PFL}, {hex(OOB)}")
            if P["yield_to"]:
                srd(a, SRD_A, P_DBG, 256)
                a("L_f1a_yield:")
                a(f"buffer_load_dword {vr(V_T0)}, off, {sr(SRD_A,4)}, 0 offset:64 sc1")
                a("s_waitcnt vmcnt(0)")
                a(f"v_readfirstlane_b32 s{S_T0}, {vr(V_T0)}")
                a(f"s_cmp_ge_u32 s{S_T0}, {P['yield_to']}")
                a("s_cbranch_scc1 L_f1a_lazy")
                a("s_sleep 8")
                timeout(a, "L_f1a_yield")
            a("L_f1a_lazy:")

    seg_loop(a, "L_f1a", True, fill, finish, 1)
    for x in st + [flag]:
        a(x)


def phase1b(a, P):
    NS = P['f_slots']
    a("s_waitcnt vmcnt(0)")
    a("s_barrier")
    x_first(a)
    srd(a, SRD_A, P_GW, 1024)
    a(f"v_and_b32 {vr(V_T0)}, 7, v0")
    a(f"v_lshlrev_b32 {vr(V_T0)}, 4, {vr(V_T0)}")
    for i in range(8):
        a(f"buffer_load_dwordx4 {vr(GW + 4 * i, 4)}, {vr(V_T0)}, {sr(SRD_A,4)}, 0 offen offset:{i * 128}")
    srd(a, SRD_A, P_WQ, 512 * 8192)
    stage(a, 8, NS, lambda c: issue256(a, SRD_A, c, STG + (c % NS) * 16384),
          lambda c: consume256(a, 0, c, STG + (c % NS) * 16384))
    a(f"s_cmp_eq_u32 s{S_FFN}, 0")
    a("s_cbranch_scc1 L_f1b_skipw")
    srd(a, SRD_A, P_WG, 512 * 3584)
    srd(a, SRD_B, P_WU, 512 * 3584)
    a(f"s_lshl_b32 s{S_OFF}, s{S_H}, 7")
    a("s_barrier")

    def issue_gu(c):
        slot = STG + (c % NS) * 16384
        for i in range(4):
            m = i >> 1
            a(f"s_add_u32 m0, s{S_W1K}, {slot + m * 8192 + (i & 1) * 4096}")
            a(f"s_add_u32 s{S_T0}, s{S_OFF}, {(64 * c + 32 * (i & 1)) * 3584}")
            a(f"buffer_load_dwordx4 {vr(V_GU0 + m)}, {sr(SRD_A if m == 0 else SRD_B,4)}, s{S_T0} offen lds")

    def consume_gu(c):
        a(f"v_add_u32 {vr(V_T0)}, {STG + (c % NS) * 16384}, {vr(V_TRG)}")
        for tt in range(4):
            for jh in range(2):
                a(f"ds_read_b64_tr_b16 {ar(128 + (4 * c + tt) * 4 + 2 * jh, 2)}, {vr(V_T0)} offset:{tt * 2048 + jh * 512}")

    stage(a, 8, NS, issue_gu, consume_gu)
    a("L_f1b_skipw:")
    mark(a, 3, V_T0, dbg_base=6)

    ws = sr(SRD_WS, 4)
    GX, GT, UP, E = 128, 160, 168, 176
    c0 = -2.0 * (2.0 / math.pi) ** 0.5 * LOG2E
    D = "row_mask:0xf bank_mask:0xf"
    t = vr(V_T1)
    gate = [f"v_dot2_f32_bf16 {vr(V_T1 + (i & 1))}, {vr(GX + i)}, {vr(GW + i)}, {vr(V_T1 + (i & 1)) if i > 1 else 0}" for i in range(32)]
    gate2 = [f"v_add_f32 {t}, {t}, {vr(V_T2)}", f"v_add_f32_dpp {t}, {t}, {t} quad_perm:[1,0,3,2] {D}",
             f"v_add_f32_dpp {t}, {t}, {t} quad_perm:[2,3,0,1] {D}", f"v_add_f32_dpp {t}, {t}, {t} row_half_mirror {D}",
             f"v_mul_f32 {t}, {f32(-LOG2E)}, {t}", f"v_exp_f32 {t}, {t}", f"v_add_f32 {t}, 1.0, {t}", f"v_rcp_f32 {t}, {t}",
             f"ds_write_b32 {vr(V_OUT)}, {t}"]
    gelu = []
    for j in range(8):
        x, e = vr(GT + j), vr(E + j)
        gelu += [f"v_mul_f32 {e}, {x}, {x}", f"v_fmaak_f32 {e}, {vr(V_KM)}, {e}, {f32(c0)}", f"v_mul_f32 {e}, {e}, {x}", f"v_exp_f32 {e}, {e}"]
    gelu += [f"v_sub_f32 {vr(V_G)}, 1.0, {vr(V_G)}"]
    for j in range(8):
        e, u = vr(E + j), vr(UP + j)
        gelu += [f"v_add_f32 {e}, 1.0, {e}", f"v_mul_f32 {u}, {u}, {vr(V_G)}", f"v_rcp_f32 {e}, {e}"]
    gelu += [f"v_mul_f32 {vr(E + j)}, {vr(E + j)}, {vr(UP + j)}" for j in range(8)]
    gelu += [f"v_cvt_pk_bf16_f32 {vr(PK + 8 + j)}, {vr(E + 2 * j)}, {vr(E + 2 * j + 1)}" for j in range(4)]
    gread = f"ds_read_b32 {vr(V_G)}, {vr(V_GC)}"
    qst = [f"buffer_store_dwordx4 {vr(PK + 4 * bb, 4)}, {vr(V_RD)}, {ws}, s{S_PQ} offen offset:{bb * 1024}" for bb in range(2)]
    hst = f"s_add_u32 s{S_T3}, s{S_PREV}, {hex(HX)}\nbuffer_store_dwordx4 {vr(PK + 8, 4)}, {vr(V_L16W)}, {ws}, s{S_T3} offen"

    def fill():
        f = {0: [gread, f"v_add_u32 {vr(V_T0)}, s{S_XCUR}, {vr(V_XG)}"]}
        xr = [f"ds_read_b128 {vr(GX + 4 * i, 4)}, {vr(V_T0)} offset:{i * 128}" for i in range(8)]
        place(f, 2, xr, 1)
        place(f, 4, gelu[:32], 3)
        place(f, 15, [f"WAITL {gread}"] + gelu[32:], 4)
        place(f, 17, qst, 1)
        place(f, 30, [hst], 1)
        place(f, 32, [f"WAITL {xr[7]}"] + gate, 2)
        place(f, 50, gate2, 1)
        return f

    def finish():
        for j in range(8):
            a(f"v_mul_f32 {vr(UP + j)}, {vr(T1 + j)}, {vr(T1 + 8 + j)}")
            a(f"v_mov_b32 {vr(GT + j)}, {vr(T1 + j)}")
        pack(a, T0, PK)
        a(f"v_add_u32 {vr(V_GC)}, 128, {vr(V_GC)}")
        a(f"v_add_u32 {vr(V_OUT)}, 128, {vr(V_OUT)}")
        a("s_waitcnt lgkmcnt(0)")

    a(f"v_mov_b32 {vr(V_KM)}, {f32(c0 * 0.044715)}")
    for j in range(8):
        a(f"v_mov_b64 {vr(T1 + 2 * j, 2)}, 0")
        a(f"v_mov_b64 {vr(GT + 2 * j, 2)}, 0")
    a(f"s_lshl_b32 s{S_T0}, s{S_W}, 11")
    a(f"v_add_u32 {vr(V_RD)}, s{S_T0}, {vr(V_L16)}")
    a(f"v_lshrrev_b32 {vr(V_OUT)}, 3, v0")
    a(f"v_lshlrev_b32 {vr(V_OUT)}, 2, {vr(V_OUT)}")
    a(f"v_add_u32 {vr(V_OUT)}, {GB}, {vr(V_OUT)}")
    a(f"v_and_b32 {vr(V_GC)}, 31, {vr(V_LANE)}")
    a(f"v_lshlrev_b32 {vr(V_GC)}, 2, {vr(V_GC)}")
    a(f"v_add_u32 {vr(V_GC)}, {GB - 128}, {vr(V_GC)}")
    seg_loop(a, "L_f1b", False, fill, finish, 3, two_variants=True)
    a("s_barrier")
    for x in [gread] + qst + gelu[:32] + ["s_waitcnt lgkmcnt(0)"] + gelu[32:] + [hst]:
        a(x)
    a("s_waitcnt vmcnt(0)")
    a("s_barrier")


ACC, QF, HF, SX, SM, OA, PF, SEL, VMF = 64, 128, 160, 176, 192, 208, 240, 252, 24
RDB = [40, 44, 48, 52, 56, 60, SM, SM + 4]
A_V, A_K = 192, 224
V_KL = V_XF
V_MX, V_LX = V_XG, V_GC


def part_slot(a, s_i, ring):
    if not ring:
        a(f"s_mul_i32 s{S_T0}, s{s_i}, 7")
        a(f"s_add_u32 s{S_T0}, s{S_T0}, s{S_SUB}")
    else:
        a(f"s_and_b32 s{S_T0}, s{s_i}, 1")
        a(f"s_add_u32 s{S_T1}, s{s_i}, 1")
        a(f"s_cmp_eq_u32 s{S_T1}, s{S_NSEG}")
        a(f"s_cselect_b32 s{S_T0}, 2, s{S_T0}")
        a(f"s_mul_i32 s{S_T1}, s{S_SUB}, 3")
        a(f"s_add_u32 s{S_T0}, s{S_T0}, s{S_T1}")
    a(f"s_lshl_b32 s{S_T0}, s{S_T0}, 20")


def part_base(a, s_i, ring):
    part_slot(a, s_i, ring)
    a(f"s_lshl_b32 s{S_T1}, s{S_W}, 18")
    a(f"s_add_u32 s{S_T0}, s{S_T0}, s{S_T1}")
    a(f"s_lshl_b32 s{S_T1}, s{S_H}, 10")
    a(f"s_add_u32 s{S_T0}, s{S_T0}, s{S_T1}")
    a(f"s_add_u32 s{S_T0}, s{S_T0}, {hex(PART)}")


def phase3(a, P):
    NS = P['f_slots']
    l = vr(V_LANE)
    t0, t1, t2, t3 = (vr(x) for x in (V_T0, V_T1, V_T2, V_T3))
    CH = 17408
    base = 0x10C00
    srd(a, SRD_A, P_WO, 4096 * 1024)
    srd(a, SRD_B, P_WD, 1792 * 1024)
    a(f"v_lshrrev_b32 {t0}, 5, {l}")
    a(f"v_bfe_u32 {t1}, {l}, 2, 2")
    a(f"v_lshl_add_u32 {t0}, {t0}, 2, {t1}")
    a(f"v_mul_u32_u24 {t0}, 1088, {t0}")
    a(f"v_bfe_u32 {t1}, {l}, 4, 1")
    a(f"v_lshl_add_u32 {t0}, {t1}, 5, {t0}")
    a(f"v_and_b32 {t1}, 3, {l}")
    a(f"v_lshl_add_u32 {t0}, {t1}, 3, {t0}")
    a(f"s_lshl_b32 s{S_T0}, s{S_W}, 8")
    a(f"v_add_u32 {vr(V_TR)}, s{S_T0}, {t0}")
    a(f"s_mul_i32 s{S_XN}, s{S_W}, 1088")

    def mk(srdreg, abase, nk):
        def issue(c):
            for i in range(4):
                a(f"s_add_u32 m0, s{S_XN}, {base + (c % NS) * CH + 4 * i * 1088}")
                a(f"s_add_u32 s{S_T0}, s{S_OFF}, {(16 * c + 4 * i) * 1024}")
                a(f"buffer_load_dwordx4 {vr(V_L16W)}, {sr(srdreg,4)}, s{S_T0} offen lds")

        def consume(c):
            a(f"v_add_u32 {t0}, {base + (c % NS) * CH}, {vr(V_TR)}")
            for t in range(4):
                for jh in range(2):
                    a(f"ds_read_b64_tr_b16 {ar(abase + (t * nk + c) * 4 + 2 * jh, 2)}, {t0} offset:{jh * 8 * 1088 + 64 * t}")
        return issue, consume

    a(f"s_lshl_b32 s{S_OFF}, s{S_H}, 17")
    stage(a, 8, NS, *mk(SRD_A, 0, 8))
    a(f"s_cmp_eq_u32 s{S_FFN}, 0")
    a("s_cbranch_scc1 L_f3_skipw")
    a("s_barrier")
    a(f"s_lshl_b32 s{S_OFF}, s{S_H}, 16")
    stage(a, 4, NS, *mk(SRD_B, 128, 4))
    a("L_f3_skipw:")

    a(f"v_lshrrev_b32 {t0}, 5, {l}")
    a(f"v_and_b32 {t1}, 7, {l}")
    a(f"v_lshlrev_b32 {t1}, 4, {t1}")
    a(f"v_lshl_add_u32 {vr(V_KM)}, {t0}, 7, {t1}")
    a(f"v_and_b32 {t1}, 15, {l}")
    a(f"v_lshlrev_b32 {t1}, 4, {t1}")
    a(f"v_lshl_add_u32 {t2}, {t0}, 9, {t1}")
    a(f"v_bfe_u32 {t3}, {l}, 4, 1")
    a(f"v_lshl_add_u32 {vr(V_VM)}, {t3}, 3, {t2}")
    a(f"v_lshrrev_b32 {t2}, 4, {l}")
    a(f"v_lshl_add_u32 {t1}, {t2}, 10, {t1}")
    a(f"s_lshl_b32 s{S_T0}, s{S_W}, 8")
    a(f"v_add_u32 {vr(V_RD)}, s{S_T0}, {t1}")
    a(f"s_and_b32 s{S_T0}, s{S_W}, 1")
    a(f"s_lshl_b32 s{S_T0}, s{S_T0}, 14")
    a(f"s_lshr_b32 s{S_T1}, s{S_W}, 1")
    a(f"s_lshl_b32 s{S_T1}, s{S_T1}, 3")
    a(f"s_add_u32 s{S_T0}, s{S_T0}, s{S_T1}")
    a(f"s_lshl_b32 s{S_T1}, s{S_H}, 5")
    a(f"s_add_u32 s{S_T0}, s{S_T0}, s{S_T1}")
    a(f"v_and_b32 {t1}, 15, {l}")
    a(f"v_lshlrev_b32 {t1}, 10, {t1}")
    a(f"v_lshl_add_u32 {t1}, {t2}, 4, {t1}")
    a(f"v_add_u32 {t1}, s{S_T0}, {t1}")
    a(f"v_cmp_gt_u32 vcc, 2, {t2}")
    a(f"v_mov_b32 {t3}, {hex(OOB)}")
    a(f"v_cndmask_b32 {vr(V_OUT)}, {t3}, {t1}, vcc")
    a(f"v_and_b32 {t1}, 15, {l}")
    a(f"v_and_b32 {t2}, 1, {l}")
    a(f"v_lshlrev_b32 {t2}, 4, {t2}")
    a(f"v_mov_b32 {t3}, 0x3f80")
    a(f"v_lshlrev_b32 {t3}, {t2}, {t3}")
    a(f"v_lshrrev_b32 {t1}, 1, {t1}")
    for r in range(4):
        a(f"v_cmp_eq_u32 vcc, {r}, {t1}")
        a(f"v_cndmask_b32 {vr(SEL + r)}, 0, {t3}, vcc")
    a(f"v_and_b32 {t1}, 31, {l}")
    a(f"v_lshlrev_b32 {t0}, 2, {t0}")
    a(f"v_sub_u32 {t1}, {t1}, {t0}")
    for i in range(16):
        a(f"v_cmp_le_i32 {sr(S_MASK + 2 * i, 2)}, {8 * (i >> 2) + (i & 3)}, {t1}")
    srd(a, SRD_A, P_OUT, 2048 * 1024)
    a(f"s_sub_u32 s{S_T2}, s{S_NSEG}, 1")
    part_base(a, S_T2, P["ring"])
    for k in range(8):
        a(f"s_add_u32 s{S_T1}, s{S_T0}, {k * 32768}")
        a(f"buffer_store_dwordx4 {vr(SENT,4)}, {vr(V_L16)}, {sr(SRD_WS,4)}, s{S_T1} offen sc1")
        if P["calm"]:
            a("s_waitcnt vmcnt(0)")
    wait_all_arrived(a, V_T0)
    mark(a, 5, V_T0, dbg_base=6)

    ws = sr(SRD_WS, 4)
    GS, NOFF, NQ = 33, 31, 35

    def offsets(s_seg):
        a(f"s_lshl_b32 s{NOFF}, s{S_H}, 6")
        a(f"s_add_u32 s{NOFF}, s{NOFF}, s{s_seg}")
        a(f"s_lshl_b32 s{NQ}, s{NOFF}, 13")
        a(f"s_lshl_b32 s{NOFF}, s{NOFF}, 15")

    def ld(dst, addr, base, off, flag="", op="buffer_load_dwordx4"):
        return f"s_add_u32 s{S_T3}, s{base}, {hex(off & ~0xfff)}\n{op} {dst}, {vr(addr)}, {ws}, s{S_T3} offen offset:{off & 0xfff} {flag}"
    ld_h = [ld(vr(HF + 4 * k, 4), V_L16, NOFF, HX + k * 1024) for k in range(4)]
    ld_k = [ld(ar(A_K + 4 * k, 4), V_KP, NOFF, KX + (k >> 1) * 4096 + (k & 1) * 1024) for k in range(8)]
    ld_v = [ld(ar(A_V + 4 * k, 4), V_L16, NOFF, VX + (k >> 1) * 4096 + (k & 1) * 1024) for k in range(8)]
    ld_q = [ld(vr(QF + 4 * k, 4), V_L16, NQ, QX + k * 1024) for k in range(8)]

    def umax(first, b, n):
        if first:
            a(f"v_max_u32 {t0}, {vr(b)}, {vr(b + 1)}")
        else:
            a(f"v_max3_u32 {t0}, {t0}, {vr(b)}, {vr(b + 1)}")
        if n == 4:
            a(f"v_max3_u32 {t0}, {t0}, {vr(b + 2)}, {vr(b + 3)}")

    def gather(tag, s_seg, flagged):
        if flagged:
            a(f"s_lshl_b32 s{S_T1}, s{s_seg}, 9")
            a(f"s_lshr_b32 s{S_T2}, s{S_H}, 3")
            a(f"s_lshl_b32 s{S_T2}, s{S_T2}, 7")
            a(f"s_add_u32 s{S_T1}, s{S_T1}, s{S_T2}")
            a(f"s_add_u32 s{S_T1}, s{S_T1}, {hex(FP)}")
            a(f"v_and_b32 {t1}, 31, {l}")
            a(f"v_lshlrev_b32 {t1}, 2, {t1}")
            a(f"{tag}_fp:")
            a(f"buffer_load_dword {t0}, {t1}, {ws}, s{S_T1} offen sc1")
            a("s_waitcnt vmcnt(0)")
            a(f"v_cmp_ne_u32 vcc, 1, {t0}")
            a(f"s_cbranch_vccz {tag}_fp_ok")
            a("s_sleep 1")
            timeout(a, f"{tag}_fp")
            a(f"{tag}_fp_ok:")
        a(f"s_sub_u32 s{S_T2}, s{S_I}, {int(flagged)}")
        part_slot(a, S_T2, P["ring"])
        a(f"s_lshl_b32 s{S_T1}, s{S_H}, 15")
        a(f"s_add_u32 s{S_T0}, s{S_T0}, s{S_T1}")
        a(f"s_add_u32 s{S_T0}, s{S_T0}, {hex(PART)}")
        a(f"{tag}_rd:")
        for i in range(8):
            a(f"s_add_u32 s{S_T1}, s{S_T0}, {i * 4096}")
            a(f"buffer_load_dwordx4 {vr(RDB[i], 4)}, {vr(V_RD)}, {ws}, s{S_T1} offen sc1")
        R = SM + 8
        for i in range(8):
            a(f"s_waitcnt vmcnt({7 - i})")
            a(f"v_mfma_f32_16x16x32_bf16 {vr(R,4)}, {vr(SEL,4)}, {vr(RDB[i], 4)}, {'0' if i == 0 else vr(R, 4)}")
            if not flagged:
                umax(i == 0, RDB[i], 4)
        if not flagged:
            a(f"v_cmp_eq_u32 vcc, -1, {t0}")
            a(f"s_cbranch_vccz {tag}_rd_ok")
            timeout(a, f"{tag}_rd")
            a(f"{tag}_rd_ok:")
        a(f"s_lshl_b32 s{S_T0}, s{s_seg}, 15")
        a(f"v_cvt_pk_bf16_f32 {vr(R)}, {vr(R)}, {vr(R + 1)}")
        a(f"v_cvt_pk_bf16_f32 {vr(R + 1)}, {vr(R + 2)}, {vr(R + 3)}")
        a(f"buffer_store_dwordx2 {vr(R,2)}, {vr(V_OUT)}, {sr(SRD_A,4)}, s{S_T0} offen")

    a(f"v_and_b32 {t0}, 31, {l}")
    a(f"s_lshr_b32 s{S_T0}, s{S_W1K}, 1")
    a(f"v_lshl_add_u32 {vr(V_KL)}, {t0}, 4, s{S_T0}")
    for j in range(4):
        a(f"v_mov_b64 {vr(VMF + 4 * j + 2, 2)}, 0")
    a(f"s_mov_b32 s{S_I}, 0")
    a(f"s_mov_b32 s{S_SEG}, s{S_SUB}")
    offsets(S_SEG)
    for x in ld_h + ld_k + ld_v + ld_q:
        a(x)
    a("L_f3:")
    a(f"s_mov_b32 s{S_OFF}, s{NOFF}")
    a(f"s_lshl_b32 s{S_T0}, s{S_I}, 7")
    a(f"v_and_b32 {t0}, 31, {l}")
    a(f"v_lshl_add_u32 {t0}, {t0}, 2, s{S_T0}")
    a(f"v_add_u32 {t0}, {GB}, {t0}")
    a(f"ds_read_b32 {vr(V_G)}, {t0}")
    a(f"s_cmp_eq_u32 s{S_FFN}, 0")
    a("s_cbranch_scc1 L_f3_zero")
    a("s_waitcnt vmcnt(9)")
    for k in range(4):
        for t in range(4):
            c = "0" if k == 0 else vr(ACC + 16 * t, 16)
            a(f"v_mfma_f32_32x32x16_bf16 {vr(ACC + 16 * t, 16)}, {ar(128 + (t * 4 + k) * 4, 4)}, {vr(HF + 4 * k, 4)}, {c}")
    a("s_branch L_f3_ffn_done")
    a("L_f3_zero:")
    for j in range(32):
        a(f"v_mov_b64 {vr(ACC + 2 * j, 2)}, 0")
    a("L_f3_ffn_done:")
    a("s_waitcnt vmcnt(0) lgkmcnt(0)")
    for k in range(8):
        c = "0" if k == 0 else vr(SX, 16)
        a(f"v_mfma_f32_32x32x16_bf16 {vr(SX,16)}, {ar(A_K + 4 * k, 4)}, {vr(QF + 4 * k, 4)}, {c}")
    a(f"v_mov_b32 {t3}, 0xff800000")
    for i in range(16):
        a(f"v_cndmask_b32 {vr(SX + i)}, {t3}, {vr(SX + i)}, {sr(S_MASK + 2 * i, 2)}")
    a(f"v_max3_f32 {t2}, {vr(SX)}, {vr(SX + 1)}, {vr(SX + 2)}")
    for i in range(3, 15, 2):
        a(f"v_max3_f32 {t2}, {t2}, {vr(SX + i)}, {vr(SX + i + 1)}")
    a(f"v_max_f32 {t2}, {t2}, {vr(SX + 15)}")
    a(f"s_mov_b32 s{S_T0}, {C_EXP}")
    a(f"v_mov_b32 {t1}, {t2}")
    a(f"v_permlane32_swap_b32 {t1}, {t2}")
    a(f"v_max_f32 {vr(V_MX)}, {t1}, {t2}")
    for r in range(16):
        a(f"v_sub_f32 {vr(SX + r)}, {vr(SX + r)}, {vr(V_MX)}")
        a(f"v_mul_f32 {vr(SX + r)}, s{S_T0}, {vr(SX + r)}")
        a(f"v_exp_f32 {vr(SX + r)}, {vr(SX + r)}")
    a(f"v_add_f32 {vr(V_LX)}, {vr(SX)}, {vr(SX + 1)}")
    a(f"v_add_f32 {t1}, {vr(SX + 2)}, {vr(SX + 3)}")
    for r in range(4, 16, 2):
        a(f"v_add_f32 {vr(V_LX)}, {vr(V_LX)}, {vr(SX + r)}")
        a(f"v_add_f32 {t1}, {t1}, {vr(SX + r + 1)}")
    a(f"v_add_f32 {vr(V_LX)}, {vr(V_LX)}, {t1}")
    a(f"s_cmp_eq_u32 s{S_I}, 0")
    a("s_cbranch_scc1 L_f3_nog")
    a(f"s_sub_u32 s{S_T3}, s{S_SEG}, 7")
    gather("L_f3g", S_T3, True)
    a("L_f3_nog:")
    mark(a, 30, V_T0, per=S_I)
    if P["far_one"]:
        a(f"s_cmp_lg_u32 s{S_W}, 0")
        a("s_cbranch_scc1 L_f3_near")
    a(f"s_movk_i32 s{S_T1}, {hex(KM + 2048)}")
    a(f"s_cmp_eq_u32 s{S_SEG}, 63")
    a(f"s_cselect_b32 s{S_T1}, {hex(KM - 0x8000 + (1 << 32))}, s{S_T1}")
    a(f"s_add_u32 s{S_T1}, s{S_T1}, s{S_OFF}")
    a("L_f3_far:")
    if P["far_op"] == "atomic":
        a(f"v_mov_b32 {t0}, 0")
        a("s_mov_b64 exec, 1")
        a(f"buffer_atomic_or {t0}, off, {ws}, s{S_T1} sc0")
        a("s_mov_b64 exec, -1")
    else:
        a(f"buffer_load_dword {t0}, off, {ws}, s{S_T1} {P['far_op']}")
    a("s_waitcnt vmcnt(0)")
    a(f"v_readfirstlane_b32 s{S_T0}, {t0}")
    a(f"s_cmp_lg_u32 s{S_T0}, -1")
    a("s_cbranch_scc1 L_f3_near")
    a(f"s_sleep {P['far_sleep']}")
    timeout(a, "L_f3_far")
    a("L_f3_near:")
    mark(a, 62, V_T0) if P.get("f3marks") else None
    if P["far_one"]:
        a("s_barrier")
    a(f"s_cmp_eq_u32 s{S_SEG}, 63")
    a("s_cbranch_scc0 L_f3_n1")
    if P["near_sleep"][1]:
        a(f"s_sleep {P['near_sleep'][1]}")
    a("s_branch L_f3_km")
    a("L_f3_n1:")
    if P["near_sleep"][0]:
        a(f"s_sleep {P['near_sleep'][0]}")
    a("L_f3_km:")
    a(f"s_add_u32 s{S_T1}, s{S_OFF}, {hex(KM)}")
    a(f"buffer_load_dwordx4 {vr(PF,4)}, {vr(V_KL)}, {ws}, s{S_T1} offen sc1")
    a(f"buffer_load_dwordx4 {vr(PF + 4, 4)}, {vr(V_L16W)}, {ws}, s{S_T1} offen offset:2048 sc1")
    a(f"s_and_b32 s{S_T0}, s{S_I}, 1")
    a(f"s_lshl_b32 s{S_T0}, s{S_T0}, 13")
    a(f"v_add_u32 {t1}, s{S_T0}, {vr(V_KL)}")
    a(f"v_add_u32 {t2}, s{S_T0}, {vr(V_L16W)}")
    a("s_waitcnt vmcnt(0)")
    umax(True, PF, 4)
    umax(False, PF + 4, 4)
    a(f"v_cmp_eq_u32 vcc, -1, {t0}")
    a("s_cbranch_vccz L_f3_got")
    timeout(a, "L_f3_km")
    a("L_f3_got:")
    a(f"ds_write_b128 {t1}, {vr(PF,4)}")
    a(f"ds_write_b128 {t2}, {vr(PF + 4, 4)} offset:2048")
    a(f"v_add_u32 {t1}, s{S_T0}, {vr(V_KM)}")
    a(f"v_add_u32 {t2}, s{S_T0}, {vr(V_VM)}")
    a("s_waitcnt lgkmcnt(0)")
    a("s_barrier")
    kr = [f"ds_read_b128 {vr(OA + 4 * k, 4)}, {t1} offset:{k * 256}" for k in range(8)]
    vrd = [f"ds_read2st64_b32 {vr(VMF + 4 * et, 2)}, {t2} offset0:{8 + 4 * et} offset1:{9 + 4 * et}" for et in range(4)]
    for x in kr + vrd:
        a(x)
    for k in range(8):
        a(f"WAITL {kr[k]}")
        a(f"v_mfma_f32_32x32x16_bf16 {vr(SM,16)}, {vr(OA + 4 * k, 4)}, {vr(QF + 4 * k, 4)}, {'0' if k == 0 else vr(SM, 16)}")
    a("s_waitcnt lgkmcnt(0)")
    a("L_f3_km_ok:")
    mark(a, 31, V_T0, per=S_I)
    a(f"s_mov_b32 s{S_T0}, {C_EXP}")
    a(f"v_max3_f32 {t2}, {vr(SM)}, {vr(SM + 1)}, {vr(SM + 2)}")
    a(f"v_max_f32 {t2}, {t2}, {vr(SM + 3)}")
    a(f"v_mov_b32 {t1}, {t2}")
    a(f"v_permlane32_swap_b32 {t1}, {t2}")
    a(f"v_max3_f32 {t2}, {t1}, {t2}, {vr(V_MX)}")
    a(f"v_sub_f32 {t3}, {vr(V_MX)}, {t2}")
    for r in range(4):
        a(f"v_sub_f32 {vr(SM + r)}, {vr(SM + r)}, {t2}")
    a(f"v_mul_f32 {t3}, s{S_T0}, {t3}")
    for r in range(4):
        a(f"v_mul_f32 {vr(SM + r)}, s{S_T0}, {vr(SM + r)}")
    a(f"v_exp_f32 {t3}, {t3}")
    for r in range(4):
        a(f"v_exp_f32 {vr(SM + r)}, {vr(SM + r)}")
    a(f"v_add_f32 {t0}, {vr(SM)}, {vr(SM + 1)}")
    a(f"v_add_f32 {t1}, {vr(SM + 2)}, {vr(SM + 3)}")
    a(f"v_add_f32 {t0}, {t0}, {t1}")
    a(f"v_fma_f32 {t0}, {vr(V_LX)}, {t3}, {t0}")
    a(f"v_mov_b32 {t1}, {t0}")
    a(f"v_permlane32_swap_b32 {t1}, {t0}")
    a(f"v_add_f32 {t0}, {t1}, {t0}")
    a(f"v_rcp_f32 {t0}, {t0}")
    a(f"v_mul_f32 {t0}, {t0}, {vr(V_G)}")
    a(f"v_mul_f32 {t2}, {t3}, {t0}")
    for r in range(0, 16, 2):
        a(f"v_pk_mul_f32 {vr(SX + r, 2)}, {vr(SX + r, 2)}, {vr(V_T2 - 1, 2)} op_sel:[0,1] op_sel_hi:[1,1]")
    for r in range(4):
        a(f"v_mul_f32 {vr(SM + r)}, {vr(SM + r)}, {t0}")
    for j in range(8):
        a(f"v_cvt_pk_bf16_f32 {vr(PF + j)}, {vr(SX + 2 * j)}, {vr(SX + 2 * j + 1)}")
    for j in range(2):
        a(f"v_cvt_pk_bf16_f32 {vr(PF + 8 + j)}, {vr(SM + 2 * j)}, {vr(SM + 2 * j + 1)}")
    a(f"v_mov_b64 {vr(PF + 10, 2)}, 0")

    def pv(et):
        o = vr(OA + 16 * (et & 1), 16)
        a(f"v_mfma_f32_32x32x16_bf16 {o}, {ar(A_V + 8 * et, 4)}, {vr(PF, 4)}, 0")
        a(f"v_mfma_f32_32x32x16_bf16 {o}, {ar(A_V + 8 * et + 4, 4)}, {vr(PF + 4, 4)}, {o}")
        a(f"v_mfma_f32_32x32x16_bf16 {o}, {vr(VMF + 4 * et, 4)}, {vr(PF + 8, 4)}, {o}")

    def cv(et):
        o = OA + 16 * (et & 1)
        for j in range(8):
            a(f"v_cvt_pk_bf16_f32 {vr(QF + 8 * et + j)}, {vr(o + 2 * j)}, {vr(o + 2 * j + 1)}")

    pv(0); pv(1); cv(0); pv(2); cv(1); pv(3); cv(2)
    part_base(a, S_I, P["ring"])
    a(f"s_add_u32 s{S_T2}, s{S_SEG}, 7")
    offsets(S_T2)

    def project(pre):
        pre = list(pre)

        def wo_t(t, ks, n=0):
            for k in ks:
                a(f"v_mfma_f32_32x32x16_bf16 {vr(ACC + 16 * t, 16)}, {ar((t * 8 + k) * 4, 4)}, {vr(QF + 4 * k, 4)}, {vr(ACC + 16 * t, 16)}")
                for _ in range(n):
                    if pre:
                        a(pre.pop(0))

        def out_t(t, bb):
            p = SX + 4 * (2 * t + bb)
            for j in range(4):
                a(f"v_cvt_pk_bf16_f32 {vr(p + j)}, {vr(ACC + 16 * t + 8 * bb + 2 * j)}, {vr(ACC + 16 * t + 8 * bb + 2 * j + 1)}")
            a(f"s_add_u32 s{S_T1}, s{S_T0}, {(2 * t + bb) * 32768}")
            a(f"buffer_store_dwordx4 {vr(p,4)}, {vr(V_L16)}, {ws}, s{S_T1} offen sc1")
        wo_t(0, range(3)); cv(3); wo_t(0, range(3, 8), 1)
        for t in range(1, 4):
            wo_t(t, range(4), 2); out_t(t - 1, 0); wo_t(t, range(4, 6), 1); out_t(t - 1, 1); wo_t(t, range(6, 8), 1)
        assert not pre
        out_t(3, 0); out_t(3, 1)

    a(f"s_add_u32 s{S_T1}, s{S_I}, 1")
    a(f"s_cmp_eq_u32 s{S_T1}, s{S_NSEG}")
    a("s_cbranch_scc1 L_f3_last")
    project(ld_h + ld_k + ld_v)
    for x in ld_q:
        a(x)
    a(f"s_lshl_b32 s{S_T1}, s{S_SEG}, 9")
    a(f"s_lshl_b32 s{S_T2}, s{S_W}, 7")
    a(f"s_add_u32 s{S_T1}, s{S_T1}, s{S_T2}")
    a(f"s_lshl_b32 s{S_T2}, s{S_H}, 2")
    a(f"s_add_u32 s{S_T1}, s{S_T1}, s{S_T2}")
    a(f"s_add_u32 s{S_T1}, s{S_T1}, {hex(FP)}")
    a(f"v_mov_b32 {t0}, 1")
    a("s_waitcnt vmcnt(8)")
    a(f"buffer_store_dword {t0}, {vr(V_FL)}, {ws}, s{S_T1} offen sc1")
    mark(a, 32, V_T0, per=S_I)
    if P["f3_rest"]:
        a(f"s_sleep {P['f3_rest']}")
    a(f"s_add_u32 s{S_SEG}, s{S_SEG}, 7")
    a(f"s_add_u32 s{S_I}, s{S_I}, 1")
    a("s_branch L_f3")
    a("L_f3_last:")
    project([])
    mark(a, 60, V_T0) if P.get("f3marks") else None
    if P["last_wait"] is not None:
        a(f"s_waitcnt vmcnt({P['last_wait']})")
    mark(a, 61, V_T0) if P.get("f3marks") else None
    gather("L_f3l", S_SEG, False)
    mark(a, 32, V_T0, per=S_I)


def follower(a, P):
    a("L_follower:")
    if P.get("f_none"):
        a(f"s_mov_b32 s{S_T0}, 0")
        a("s_barrier")
        arrive(a, 20)
        a("s_branch L_exit")
    a(f"s_and_b32 s{S_T0}, s2, 7")
    a(f"s_sub_u32 s{S_T0}, s{S_T0}, 1")
    a(f"s_lshl_b32 s{S_T0}, s{S_T0}, 5")
    a(f"s_lshr_b32 s{S_T1}, s2, 3")
    a(f"s_add_u32 s{S_T0}, s{S_T0}, s{S_T1}")
    a(f"s_mul_i32 s{S_H}, s{S_T0}, 9363")
    a(f"s_lshr_b32 s{S_H}, s{S_H}, 16")
    a(f"s_mul_i32 s{S_T1}, s{S_H}, 7")
    a(f"s_sub_u32 s{S_SUB}, s{S_T0}, s{S_T1}")
    a(f"s_cmp_eq_u32 s{S_SUB}, 0")
    a(f"s_cselect_b32 s{S_NSEG}, 10, 9")
    a(f"s_cmp_lt_u32 s{S_H}, 28")
    a(f"s_cselect_b32 s{S_FFN}, 1, 0")
    if P["warm"]:
        a(f"s_mul_i32 s{S_T1}, s{S_T0}, 20480")
        a("v_lshlrev_b32 v127, 4, v0")
        n = 0
        for m in P["warm"]:
            srd(a, SRD_A, {"q": P_WQ, "o": P_WO, "k": P_WK, "v": P_WV}[m], 512 * 8192)
            for k in range(5):
                a(f"s_add_u32 s{S_T2}, s{S_T1}, {k * 4096}")
                a(f"buffer_load_dwordx4 {vr(128 + 4 * n, 4)}, v127, {sr(SRD_A,4)}, s{S_T2} offen")
                n += 1
    lane_setup(a)
    srd(a, SRD_C, P_X, 2048 * 1024)

    def meanwhile():
        t0, t1, t2, t3 = (vr(x) for x in (V_T0, V_T1, V_T2, V_T3))
        a(f"v_mul_u32_u24 {t0}, 7, {vr(V_LANE)}")
        a(f"v_add_u32 {t0}, s{S_SUB}, {t0}")
        a(f"v_cmp_gt_u32 vcc, 64, {t0}")
        a(f"v_mov_b32 {t3}, {hex(OOB)}")
        a(f"v_lshlrev_b32 {t1}, 2, {t0}")
        a(f"v_cndmask_b32 {t1}, {t3}, {t1}, vcc")
        a(f"v_lshlrev_b32 {t2}, 9, {t0}")
        a(f"v_cndmask_b32 {t2}, {t3}, {t2}, vcc")
        a(f"v_mov_b32 {t0}, 0")
        a(f"s_lshl_b32 s{S_T0}, s{S_H}, 10")
        a(f"s_lshl_b32 s{S_T1}, s{S_W}, 8")
        a(f"s_add_u32 s{S_T0}, s{S_T0}, s{S_T1}")
        a(f"s_add_u32 s{S_T0}, s{S_T0}, {hex(FKV)}")
        a(f"buffer_store_dword {t0}, {t1}, {sr(SRD_WS,4)}, s{S_T0} offen sc1")
        a(f"s_lshl_b32 s{S_T0}, s{S_H}, 2")
        a(f"s_lshl_b32 s{S_T1}, s{S_W}, 7")
        a(f"s_add_u32 s{S_T0}, s{S_T0}, s{S_T1}")
        a(f"s_add_u32 s{S_T0}, s{S_T0}, {hex(FP)}")
        a(f"buffer_store_dword {t0}, {t2}, {sr(SRD_WS,4)}, s{S_T0} offen sc1")
        x_first(a)

    mark(a, 0, V_T0, dbg_base=6)
    phase1a(a, meanwhile, 10, P)
    mark(a, 2, V_T0, dbg_base=6)
    if P.get("f_exit") == 1:
        a("s_branch L_exit")
    phase1b(a, P)
    mark(a, 4, V_T0, dbg_base=6)
    if P.get("f_exit") == 2:
        a("s_branch L_exit")
    phase3(a, P)
    mark(a, 6, V_T0, dbg_base=6)
    a("s_branch L_exit")
```

```python
from asmlib import vr, ar, sr, Ins
from common import *

L_MEM, L_Q, L_K, L_OWN, L_SP, L_O, L_DUMMY, L_SEL, L_W = 0, 0x2000, 0x2900, 0x3200, 0x5600, 0x6600, 0x6E00, 0x7600, 0x8000
PS = 576
(V_L16, V_WL0, V_WL1, V_MW, V_QW, V_TRQ, V_W2, V_R2, V_OW, V_PS, V_MS, V_TD, V_VX, V_KMS, V_IDX, V_SPW) = range(16)
QA, KA, VA, KXF, VXF, TMP, ST, MEM = 16, 24, 32, 40, 48, 56, 64, 96
LDS_SET = [("q", 0, 0), ("q", 1, 0), ("k", 2, 0), ("k", 3, 0), ("v", 6, 0), ("v", 7, 0), ("o", 0, 3), ("o", 1, 3)]
_HOME = {}
for _m, _kk, _tp in [("o", kk, tp) for tp in range(4) for kk in range(2)] + [(m, kk, 0) for m in "kqv" for kk in range(8)]:
    if (_m, _kk, _tp) not in LDS_SET:
        _n = len(_HOME) * 16
        _HOME[(_m, _kk, _tp)] = ("a", _n) if _n < 256 else ("v", _n - 128)


def wreg(m, kk, et, tp=0):
    if (m, kk, tp) in LDS_SET:
        return "v", ST + 16 * (kk & 1) + 8 * et
    k, b = _HOME[(m, kk, tp)]
    return k, b + 8 * et


def wop(m, kk, et, tp=0):
    k, b = wreg(m, kk, et, tp)
    return (ar if k == "a" else vr)(b, 8)
S_S, S_W1K, S_KV, S_RPC, S_RPO, S_RMC, S_RMO, S_OFF, S_RPL, S_KMO, S_C, S_FMO, S_FKO = range(70, 83)
S_KVM = 84
S_T4, S_T5 = 86, 87
S_TK, S_TKH, S_TWO = 81, 77, 74
S_ONE, S_CC, S_VAL, S_RML, S_RMS, S_KOWN = 16, 18, 12, 14, 15, 83
DPP = "row_mask:0xf bank_mask:0xf"
NOSW = [0]
SEG = [64]


def smf(a, d, x, w):
    a(f"v_smfmac_f32_16x16x64_bf16 {vr(d,4)}, {vr(x,4)}, {w}, {vr(V_IDX)}")


def lane_ids(a):
    T = list(range(100, 110))
    l, c, g, t0, t1, t2, t3, r, cc, f = (vr(x) for x in T)
    a(f"v_and_b32 {l}, 63, v0")
    a(f"v_and_b32 {c}, 15, {l}")
    a(f"v_lshrrev_b32 {g}, 4, {l}")
    a(f"v_bfe_u32 {r}, {l}, 2, 2")
    a(f"v_and_b32 {cc}, 3, {l}")
    a(f"s_lshl_b32 s{S_W1K}, s{S_W}, 10")


def setup_staging(a):
    T = list(range(100, 110))
    l, c, g, t0, t1, t2, t3, r, cc, f = (vr(x) for x in T)
    w = f"s{S_W}"
    a(f"s_lshl_b32 s{S_T0}, {w}, 1")
    a(f"v_and_b32 {f}, 1, {g}")
    a(f"v_or_b32 {f}, s{S_T0}, {f}")
    a(f"v_lshlrev_b32 {f}, 1, {f}")
    a(f"v_xor_b32 {t0}, {c}, {f}" if not NOSW[0] else f"v_mov_b32 {t0}, {c}")
    a(f"s_lshl_b32 s{S_T0}, {w}, 2")
    a(f"v_add_u32 {t1}, s{S_T0}, {g}")
    a(f"v_lshlrev_b32 {t2}, 4, {t0}")
    a(f"v_lshl_add_u32 v116, {t1}, 13, {t2}")
    a(f"v_lshl_add_u32 v117, {t1}, 10, {t2}")
    a(f"v_lshrrev_b32 {t0}, 1, {g}")
    a(f"v_lshlrev_b32 {t0}, 4, {t0}")
    a(f"v_lshrrev_b32 {t1}, 1, {r}")
    a(f"v_lshl_add_u32 {t0}, {t1}, 3, {t0}")
    a(f"v_and_b32 {t2}, 1, {g}")
    a(f"v_lshl_add_u32 {t0}, {t2}, 2, {t0}")
    a(f"v_and_b32 {f}, 1, {r}")
    a(f"v_add_u32 {t0}, {t0}, {f}")
    a(f"v_lshl_add_u32 {f}, {t2}, 1, {f}")
    a(f"v_lshl_add_u32 {f}, {t1}, 2, {f}")
    a(f"v_lshlrev_b32 {f}, 1, {f}")
    a(f"v_lshrrev_b32 {t1}, 1, {cc}")
    a(f"v_add_u32 {t1}, s{S_T0}, {t1}")
    a(f"v_xor_b32 {t1}, {t1}, {f}")
    a(f"v_lshlrev_b32 {t1}, 4, {t1}")
    a(f"v_lshl_add_u32 {t0}, {t0}, 8, {t1}")
    a(f"v_and_b32 {t1}, 1, {cc}")
    a(f"v_lshl_add_u32 v118, {t1}, 3, {t0}")
    a("v_xor_b32 v119, 32, v118")


def setup(a):
    T = list(range(100, 110))
    l, c, g, t0, t1, t2, t3, r, cc, f = (vr(x) for x in T)
    w = f"s{S_W}"
    a(f"v_lshlrev_b32 {vr(V_L16)}, 4, {l}")
    a(f"v_add_u32 {vr(V_SPW)}, s{S_W1K}, {vr(V_L16)}")
    a(f"s_lshl_b32 s{S_T0}, {w}, 12")
    a(f"s_add_u32 s{S_T0}, s{S_T0}, {L_W}")
    a(f"v_add_u32 {vr(V_WL0)}, s{S_T0}, {vr(V_L16)}")
    a(f"v_add_u32 {vr(V_WL1)}, 0x10000, {vr(V_WL0)}")
    a(f"v_lshrrev_b32 {t0}, 5, {l}")
    a(f"v_bfe_u32 {t1}, {l}, 1, 1")
    a(f"v_lshl_add_u32 {t0}, {t0}, 1, {t1}")
    a(f"v_bfe_u32 {t1}, {l}, 2, 3")
    a(f"v_lshlrev_b32 {t1}, 5, {t1}")
    a(f"v_lshl_add_u32 {t0}, {t0}, 8, {t1}")
    a(f"v_and_b32 {t1}, 1, {l}")
    a(f"v_lshl_add_u32 {t0}, {t1}, 4, {t0}")
    a(f"s_lshl_b32 s{S_T0}, {w}, 11")
    a(f"v_add_u32 {vr(V_MW)}, s{S_T0}, {t0}")
    a(f"v_mul_u32_u24 {t0}, {PS}, {g}")
    a(f"v_lshl_add_u32 {t0}, {c}, 3, {t0}")
    a(f"s_and_b32 s{S_T0}, {w}, 1")
    a(f"s_lshl_b32 s{S_KOWN}, s{S_T0}, 7")
    a(f"s_lshr_b32 s{S_T1}, {w}, 1")
    a(f"s_lshl_b32 s{S_T1}, s{S_T1}, 2")
    a(f"s_add_u32 s{S_T0}, s{S_KOWN}, s{S_T1}")
    a(f"v_add_u32 {vr(V_QW)}, s{S_T0}, {t0}")
    a(f"s_mul_i32 s{S_T1}, {w}, 2304")
    a(f"s_add_u32 s{S_T1}, s{S_T1}, {L_OWN}")
    a(f"v_add_u32 {vr(V_W2)}, s{S_T1}, {t0}")
    a(f"v_mul_u32_u24 {t0}, {PS}, {cc}")
    a(f"v_and_b32 {t2}, 1, {g}")
    a(f"v_lshl_add_u32 {t2}, {t2}, 2, {r}")
    a(f"v_lshl_add_u32 {t0}, {t2}, 3, {t0}")
    a(f"v_lshrrev_b32 {t1}, 1, {g}")
    a(f"v_lshl_add_u32 {vr(V_TRQ)}, {t1}, 8, {t0}")
    a(f"v_lshl_add_u32 {t0}, {t1}, 7, {t0}")
    a(f"v_add_u32 {vr(V_R2)}, s{S_T1}, {t0}")
    a(f"v_lshlrev_b32 {t0}, 6, {r}")
    a(f"v_lshl_add_u32 {t0}, {t1}, 5, {t0}")
    a(f"v_and_b32 {t1}, 1, {cc}")
    a(f"v_lshl_add_u32 {t0}, {t1}, 4, {t0}")
    a(f"v_and_b32 {t2}, 1, {g}")
    a(f"v_lshl_add_u32 {t0}, {t2}, 3, {t0}")
    a(f"s_lshl_b32 s{S_T0}, {w}, 9")
    a(f"v_add_u32 {t0}, s{S_T0}, {t0}")
    a(f"v_xor_b32 {t2}, 8, {t0}")
    a(f"v_add_u32 {t2}, {L_DUMMY}, {t2}")
    a(f"v_add_u32 {t0}, {L_O}, {t0}")
    a(f"v_cmp_gt_u32 vcc, 2, {cc}")
    a(f"v_cndmask_b32 {vr(V_OW)}, {t2}, {t0}, vcc")
    a(f"v_mov_b32 {t0}, 0x4444")
    a(f"v_mov_b32 {t2}, 0xeeee")
    a(f"v_cndmask_b32 {vr(V_IDX)}, {t2}, {t0}, vcc")
    a(f"v_lshl_add_u32 {t0}, {r}, 1, {t1}")
    a(f"v_lshlrev_b32 {t0}, 4, {t0}")
    a(f"v_lshl_add_u32 {t0}, {g}, 7, {t0}")
    a(f"v_add_u32 {t0}, s{S_T0}, {t0}")
    a(f"v_mov_b32 {t3}, {hex(OOB)}")
    a(f"v_lshrrev_b32 {t1}, 1, {cc}")
    a(f"s_lshr_b32 s{S_T1}, {w}, 1")
    a(f"v_cmp_eq_u32 vcc, s{S_T1}, {t1}")
    a(f"v_cndmask_b32 {vr(V_KMS)}, {t3}, {t0}, vcc")
    a(f"v_lshrrev_b32 {t0}, 3, {c}")
    a(f"v_lshl_add_u32 {t0}, {g}, 1, {t0}")
    a(f"s_lshl_b32 s{S_T0}, {w}, 3")
    a(f"v_add_u32 {t0}, s{S_T0}, {t0}")
    a(f"v_and_b32 {t1}, 7, {c}")
    a(f"v_lshlrev_b32 {t1}, 3, {t1}")
    a(f"v_mul_u32_u24 {t0}, {128 * SEG[0]}, {t0}")
    a(f"v_add_u32 {vr(V_PS)}, {t0}, {t1}")
    a(f"v_lshlrev_b32 {t0}, 4, {g}")
    a(f"v_lshl_add_u32 {t0}, {c}, 2, {t0}")
    a(f"v_cmp_gt_u32 vcc, 4, {c}")
    a(f"v_cndmask_b32 {vr(V_MS)}, {t3}, {t0}, vcc")
    a(f"s_lshl_b32 s{S_T0}, {w}, 12")
    a(f"v_lshlrev_b32 {t0}, 9, {g}")
    a(f"v_add_u32 {t0}, s{S_T0}, {t0}")
    a(f"v_lshl_add_u32 {vr(V_VX)}, {c}, 4, {t0}")
    S = 112
    a(f"v_lshrrev_b32 {t0}, 2, {c}")
    a(f"v_and_b32 {t1}, 1, {c}")
    a(f"v_lshl_add_u32 {t0}, {t1}, 2, {t0}")
    a(f"v_and_b32 {t1}, 1, {t0}")
    a(f"v_lshrrev_b32 {t0}, 1, {t0}")
    a(f"v_lshlrev_b32 {t1}, 4, {t1}")
    a(f"v_mov_b32 {t2}, 0x3f80")
    a(f"v_lshlrev_b32 {t2}, {t1}, {t2}")
    a(f"v_and_b32 {t1}, 2, {c}")
    a(f"v_cmp_eq_u32 vcc, 0, {t1}")
    a(f"v_cndmask_b32 {t2}, 0, {t2}, vcc")
    for i in range(4):
        a(f"v_cmp_eq_u32 vcc, {i}, {t0}")
        a(f"v_cndmask_b32 {vr(S + i)}, 0, {t2}, vcc")
    a(f"ds_write_b128 {vr(V_L16)}, {vr(S,4)} offset:{L_SEL}")
    a("v_mov_b64 v[120:121], 0")
    a("v_mov_b64 v[122:123], 0")
    for i in range(3):
        a(f"ds_write_b128 {vr(V_SPW)}, v[120:123] offset:{L_OWN + i * 4096}")


def init_handoffs(a):
    a("s_waitcnt lgkmcnt(0)")
    a("v_mov_b64 v[120:121], -1")
    a("v_mov_b64 v[122:123], -1")
    sg = SEG[0]
    a(f"s_mul_i32 s{S_RPC}, s{S_H}, {sg}")
    a(f"s_mul_i32 s{S_T0}, s{S_W}, {32 * sg}")
    a(f"s_add_u32 s{S_RMC}, s{S_RPC}, s{S_T0}")
    a(f"s_add_u32 s{S_RMC}, s{S_RMC}, {hex(RM)}")
    a(f"s_add_u32 s{S_RMO}, s{S_RMC}, 0x4000")
    a(f"s_add_u32 s{S_RPC}, s{S_RPC}, {hex(RP)}")
    a(f"s_mul_i32 s{S_RPL}, s{S_H}, {128 * sg}")
    a(f"s_add_u32 s{S_RPL}, s{S_RPL}, s{S_T0}")
    a(f"s_add_u32 s{S_RPL}, s{S_RPL}, {hex(RP)}")
    a(f"s_add_u32 s{S_T1}, s{S_RPL}, 0x80000")
    for base in (S_RPL, S_T1):
        for i in range(2):
            a(f"buffer_store_dwordx4 v[120:123], {vr(V_L16)}, {sr(SRD_WS,4)}, s{base} offen offset:{i * 16 * sg} sc1")
    for base in (S_RMC, S_RMO):
        a(f"buffer_store_dword v120, {vr(V_MS)}, {sr(SRD_WS,4)}, s{base} offen sc1")
    a(f"s_lshl_b32 s{S_TK}, s{S_W}, 8")
    a(f"s_add_u32 s{S_TK}, s{S_TK}, {hex(TICK)}")
    a(f"s_lshl_b32 s{S_TKH}, s{S_H}, 2")
    a(f"s_add_u32 s{S_TKH}, s{S_TKH}, s{S_TK}")
    a(f"s_mov_b32 s{S_TWO}, 1")
    a(f"s_mov_b32 s{S_TWO + 1}, 1")
    a("v_mov_b32 v126, 0")
    a(f"v_lshrrev_b32 v127, 2, {vr(V_L16)}")
    a(f"s_mov_b64 exec, {sr(S_TWO,2)}")
    a(f"buffer_store_dword v126, v127, {sr(SRD_WS,4)}, s{S_TKH} offen sc1")
    a("s_mov_b64 exec, -1")
    srd(a, SRD_C, P_DBG, 256)
    a(f"s_getreg_b32 s{S_T0}, hwreg(HW_REG_XCC_ID, 0, 4)")
    a(f"s_lshl_b32 s{S_T0}, 1, s{S_T0}")
    a(f"v_mov_b32 v124, s{S_T0}")
    a(f"s_cmp_lg_u32 s{S_W}, 0")
    a("s_cbranch_scc1 L_noxcc")
    a("s_mov_b64 exec, 1")
    a(f"buffer_atomic_or v124, off, {sr(SRD_C,4)}, 0 offset:128")
    a("s_mov_b64 exec, -1")
    a("L_noxcc:")


def load_weights(a, meanwhile, extra, hooks, order, depth):
    chunks = [(m, kk, 0) for m in "qkv" for kk in range(8)] + [("o", kk, tp) for tp in range(4) for kk in range(2)]
    chunks = [c for c in chunks if c not in LDS_SET]
    if order.startswith("rr"):
        per = {m: [c for c in chunks if c[0] == m] for m in "oqkv"}
        chunks = [per[m][i] for i in range(6) for m in order[2:]]
    else:
        chunks = sorted(chunks, key=lambda c: order.index(c[0]))
    chunks += LDS_SET
    ptr = {"q": P_WQ, "k": P_WK, "v": P_WV, "o": P_WO}
    a(f"s_lshl_b32 s{S_T4}, s{S_H}, 8")
    a(f"s_lshl_b32 s{S_T5}, s{S_H}, 17")

    def issue(c):
        m, kk, tp = chunks[c]
        if c == 0 or chunks[c - 1][0] != m:
            srd(a, SRD_A, ptr[m], 512 * 8192)
        for i in range(4):
            a(f"s_add_u32 m0, s{S_W1K}, {L_W + (c % 8) * 16384 + i * 4096}")
            if m == "o":
                a(f"s_add_u32 s{S_T0}, s{S_T5}, {(64 * kk + 16 * i) * 1024 + tp * 256}")
                a(f"buffer_load_dwordx4 v117, {sr(SRD_A,4)}, s{S_T0} offen lds")
            else:
                a(f"s_add_u32 s{S_T0}, s{S_T4}, {(64 * kk + 16 * i) * 8192}")
                a(f"buffer_load_dwordx4 v116, {sr(SRD_A,4)}, s{S_T0} offen lds")

    def dest(c, et):
        m, kk, tp = chunks[c]
        return wreg(m, kk, et, tp)

    def consume(c):
        for et in range(2):
            a(f"v_add_u32 v{114 + et}, {L_W + (c % 8) * 16384}, v{118 + et}")
        for et in range(2):
            k, b = dest(c, et)
            for q in range(4):
                reg = (ar if k == "a" else vr)(b + 2 * q, 2)
                a(f"ds_read_b64_tr_b16 {reg}, v{114 + et} offset:{(32 * (q >> 1) + 2 * (q & 1)) * 256}")

    def writeback(c):
        base = V_WL0 if (c % 8) < 4 else V_WL1
        for i in range(4):
            a(f"ds_write_b128 {vr(base)}, {vr(ST + 16 * (c & 1) + 4 * i, 4)} offset:{(c % 4) * 16384 + i * 1024}")

    def after(c):
        if c % 4 == 0 and TRACE_ON[0] == 1:
            mark(a, 20 + c // 4, 124)
        if c == 7:
            arrive(a, 125)
        if c in hooks:
            hooks[c]()
        if c >= 25:
            writeback(c - 1)

    def throttle():
        L = a.uid("L_thr")
        a(f"s_and_b32 s{S_T0}, s{S_H}, 3")
        a(f"s_cmp_eq_u32 s{S_T0}, 1")
        a(f"s_cbranch_scc1 {L}")
        a(f"s_waitcnt vmcnt({4 * (depth - 1)})")
        a(f"{L}:")

    stage(a, 32, 8, issue, consume, after, meanwhile, extra, throttle if depth else None)
    a("s_barrier")
    writeback(31)


def wl_read(a, dst, slot, et, half):
    base = V_WL0 if slot < 4 else V_WL1
    a(f"ds_read_b128 {vr(dst + 8 * et + 4 * half, 4)}, {vr(base)} offset:{(slot % 4) * 16384 + et * 2048 + half * 1024}")


def wl_chunk(a, dst, slot):
    for et in range(2):
        for half in range(2):
            wl_read(a, dst, slot, et, half)


def kv_poll(a, L, s_seg, vt):
    a(f"v_lshrrev_b32 {vr(vt)}, 2, {vr(V_L16)}")
    a(f"{L}_p:")
    a(f"buffer_load_dword {vr(V_TD)}, {vr(vt)}, {sr(SRD_WS,4)}, s{S_FKO} offen sc1")
    a("s_waitcnt vmcnt(0)")
    a(f"v_cmp_eq_u32 {sr(S_KVM,2)}, 1, {vr(V_TD)}")
    a(f"s_bitcmp1_b64 {sr(S_KVM,2)}, s{s_seg}")
    a(f"s_cbranch_scc1 {L}_ok")
    timeout(a, f"{L}_p")


def fold(pk, d, out, scale=False):
    if pk:
        r = [f"v_pk_add_f32 {vr(d,2)}, {vr(d,2)}, {vr(d + 2, 2)}"]
        if scale:
            r.append(f"v_pk_mul_f32 {vr(d,2)}, {vr(d,2)}, {sr(S_CC,2)}")
    else:
        r = [f"v_add_f32 {vr(d + i)}, {vr(d + i)}, {vr(d + 2 + i)}" for i in range(2)]
        if scale:
            r += [f"v_mul_f32 {vr(d + i)}, s{S_CC}, {vr(d + i)}" for i in range(2)]
    return r + [f"v_cvt_pk_bf16_f32 {vr(out)}, {vr(d)}, {vr(d + 1)}"]


def zip2(x, y):
    return [z for p in zip(x, y) for z in p]


def weave(a, mf, fill, report=None):
    parts = [[l for l in m.split("\n") if l.strip()] for m in mf]
    for x in parts[0][:-1]:
        a(x)
    for i, m in enumerate(parts):
        a(m[-1])
        first, last, written = [], [], set()
        for x in fill.pop(i, []):
            lines = [l for l in x.split("\n") if l.strip()]
            head = lines[0]
            if head.startswith("v_"):
                last.append(x)
                written |= Ins(head).w
            elif not head.startswith(("WAIT", "s_barrier")) and Ins(head).r & written:
                last.append(x)
            elif head.startswith("WAIT") and last and not last[-1].startswith("v_"):
                last.append(x)
            else:
                first.append(x)
        lead = parts[i + 1][:-1] if i + 1 < len(parts) else []
        if any(not x.startswith("v_") for x in last):
            order = first + last + lead
        else:
            order = first + lead + last
        if report is not None:
            report.append((i, len(first) + len(lead), len(last)))
        for x in order:
            a(x)
    assert not fill, fill


def spread(fill, start, items, per=2):
    s = start
    for x in items:
        while len(fill.setdefault(s, [])) >= per:
            s += 1
        fill[s].append(x)
    return s


def smfs(d, x, w):
    return f"v_smfmac_f32_16x16x64_bf16 {vr(d,4)}, {vr(x,4)}, {w}, {vr(V_IDX)}"


def wl_list(dst, slot):
    base = V_WL0 if slot < 4 else V_WL1
    return [f"ds_read_b128 {vr(dst + 4 * i, 4)}, {vr(base)} offset:{(slot % 4) * 16384 + i * 1024}" for i in range(4)]


def cost(x):
    if x.startswith("ds_read_b128"):
        return 10
    if x.startswith("buffer"):
        return 16
    return 4


def timed(a, work, budget):
    while work and budget >= cost(work[0]):
        budget -= cost(work[0])
        a(work.pop(0))
    a.nops(budget)


def check(a, b, t):
    a(f"v_max3_u32 {vr(t)}, {vr(b)}, {vr(b + 1)}, {vr(b + 2)} ; nocheck")
    a(f"v_max3_u32 {vr(t + 1)}, {vr(b + 3)}, {vr(b + 4)}, {vr(b + 5)} ; nocheck")
    a(f"v_max3_u32 {vr(t)}, {vr(t)}, {vr(b + 6)}, {vr(b + 7)} ; nocheck")
    a(f"v_max_u32 {vr(t)}, {vr(t)}, {vr(t + 1)}")
    a(f"v_cmp_eq_u32 vcc, -1, {vr(t)}")


def poll_issue(a, tag, issue, bufs, d, gap, work, first=(), timed_extra=()):
    a.nops(d)
    stamp(a, tag[-2:] + "i")
    for x in first:
        a(x)
    issue(bufs[0])
    events = sorted([(gap * k, b) for k, b in enumerate(bufs) if k] + list(timed_extra), key=lambda e: e[0])
    now, order = 24, []
    for t, e in events:
        timed(a, work, max(0, t - now))
        now = max(now, t)
        if isinstance(e, str):
            a(e)
            now += 8
            order.append(e)
        else:
            issue(e)
            now += 24
            order += [e, e]
    for x in work:
        a(x)
    return order


def pingpong(a, tag, issue, use, sets, again, count=None):
    a(f"{tag}_miss:")
    for k in (0, 1):
        if count:
            a(count)
        if k:
            again(sets[k])
        a("s_mov_b64 exec, vcc")
        issue(sets[k])
        a("s_mov_b64 exec, -1")
        use(sets[1 - k], 2)
        a(f"s_cbranch_vccz {tag}_got")
    timeout(a, f"{tag}_miss")


def kvm_stores():
    return [f"buffer_store_dwordx4 {vr(KA + 4, 4)}, {vr(V_SPW)}, {sr(SRD_WS,4)}, s{S_KMO} offen offset:2048 sc1",
            f"buffer_store_dwordx4 {vr(TMP + 4, 4)}, {vr(V_KMS)}, {sr(SRD_WS,4)}, s{S_KMO} offen sc1"]


def publish_kvm(a):
    for x in kvm_stores():
        a(x)


STAMPS = []
STAMP_OP = ['s_memtime']


def stamp_s(name):
    if TRACE_ON[0] == 1 and name in STAMPS:
        i = STAMPS.index(name)
        if name == "rt":
            return f"s_memrealtime s[{88 + 2 * i}:{89 + 2 * i}]"
        return f"{STAMP_OP[0]} s[{88 + 2 * i}:{89 + 2 * i}]"
    return ""


def stamp(a, name):
    a(stamp_s(name))


def stamp_fold(a):
    if TRACE_ON[0] == 1:
        for i in range(len(STAMPS) - 1):
            a(f"s_sub_u32 s39, s{90 + 2 * i}, s{88 + 2 * i}")
            a(f"s_add_u32 s{28 + i}, s{28 + i}, s39")


def step_loop(a, name, st, P):
    ws = sr(SRD_WS, 4)
    pkq, pkv, pko = P["pkq"], P["pkv"], P["pko"]
    STAMPS[:] = P.get("stamps", ["top", "vend", "owr", "b3", "wo", "h1", "h2"])
    STAMP_OP[0] = "s_memrealtime" if P.get("rt") else "s_memtime"
    cold = []
    PSO = (S_RPC, S_T4, S_T0, S_T5)
    VP, LA, ONE, EX, EM, ZQ = KA + 4, ST + 4, ST, ST + 8, ST + 12, ST + 16
    QP = f"quad_perm:[2,3,0,1] {DPP}"
    memrd = [f"ds_read_b128 {vr(MEM + 4 * kk, 4)}, {vr(V_L16)} offset:{L_MEM + kk * 1024}" for kk in range(8)]
    vmf = lambda kks: [smfs(VA + 4 * et, MEM + 4 * kk, wop("v", kk, et)) for kk in kks for et in range(2)]
    ref1, ref2, ref3 = (wl_list(ST, 2 * g) + wl_list(ST + 16, 2 * g + 1) for g in (1, 2, 3))
    kwrite = f"ds_write2st64_b32 {vr(V_QW)}, {vr(KA + 2)}, {vr(KA + 3)} offset0:{L_K // 256} offset1:{L_K // 256 + 1}"
    kown = [f"v_add_u32 {vr(TMP + 4)}, s{S_KOWN}, {vr(V_TRQ)}",
            f"ds_read_b64_tr_b16 {vr(TMP + 6, 2)}, {vr(TMP + 4)} offset:{L_K + 64}",
            f"ds_read_b64_tr_b16 {vr(TMP + 4, 2)}, {vr(TMP + 4)} offset:{L_K}"]

    a(f"{name}:")
    a.skip = set(P.get("skip", ()))
    a("s_waitcnt lgkmcnt(0)")
    stamp_fold(a)
    a("s_barrier")
    stamp(a, "top")
    ANCHOR = "@top"
    a.anchor(ANCHOR)
    stamp(a, "rt")
    for x in memrd[:8 - len(P["mem_at"])]:
        a(x)
    for k in range(P["busy_top"]):
        a(f"v_mfma_f32_16x16x32_bf16 {vr(MEM + 28, 4)}, {vr(KXF,4)}, {vr(KXF,4)}, 0")
    if P["kv_async"]:
        a(f"s_and_b32 s{S_T0}, s{S_KVM}, s{S_KVM + 1}")
        a(f"s_cmp_eq_u32 s{S_T0}, -1")
        a(f"s_cbranch_scc0 {name}_fl")
        a(f"{name}_fl_done:")
        cold.append(lambda: (a(f"{name}_fl:"), a(f"buffer_load_dword {vr(V_TD)}, {vr(MEM + 28)}, {ws}, s{S_FKO} offen sc1"),
                             a(f"s_branch {name}_fl_done")))
    rmre = f"buffer_store_dword {vr(TMP)}, {vr(V_MS)}, {ws}, s{S_RMO} offen {st}"
    rein = [f"buffer_store_dwordx4 {vr(TMP,4)}, {vr(V_L16)}, {ws}, s{S_T1} offen offset:{i * 16 * SEG[0]} {st}" for i in range(2)]
    vload = [f"buffer_load_dwordx4 {vr(VXF + 4 * et, 4)}, {vr(V_VX)}, {ws}, s{S_KV} offen offset:{VX + et * 256} sc1" for et in range(2)]
    mf, fill = [], {}
    put = lambda sl, *xs: fill.setdefault(sl, []).extend(xs)
    def order(split, kks=range(8)):
        kks = list(kks)
        return [(kk, et) for kk in kks[:split] for et in range(2)] + [(kk, et) for et in range(2) for kk in kks[split:]]
    for kk, et in order(P["q_split"]):
        mf.append((f"WAITL {memrd[kk]}\n" if et == 0 else "") + smfs(QA + 4 * et, MEM + 4 * kk, wop("q", kk, et)))
    for k, sl in enumerate(P["mem_at"]):
        kk = 8 - len(P["mem_at"]) + k
        put(sl, (f"WAITV {ANCHOR}\n" if kk == 6 else "") + memrd[kk])
    for sl, x in zip(P["ref1_at"], ref1):
        put(sl, x)
    for sl, x in zip(P["pub_at"], vload + [rmre] + rein + kvm_stores()[:1]):
        if sl == -1:
            a(x)
        elif sl is not None:
            put(sl, x)
    put(P["kz_at"], f"v_mov_b64 {vr(KA + 4, 2)}, 0")
    put(P["kz_at"] + 1, f"v_mov_b64 {vr(KA + 6, 2)}, 0")
    for sl, n in P["nop_at"]:
        put(sl, f"s_nop {n}")
    cst = [f"v_mov_b64 {vr(ONE,2)}, {sr(S_ONE,2)}", f"v_mov_b64 {vr(ONE + 2, 2)}, {sr(S_ONE,2)}", f"v_mov_b64 {vr(EM,2)}, 0",
           f"v_mov_b32 {vr(EM + 3)}, 0", f"v_mov_b64 {vr(ZQ,2)}, 0", f"v_mov_b64 {vr(ZQ + 2, 2)}, 0"]
    for sl, x in zip(P["cst_at"], cst[:5] if P["zero_valu"] == 2 else cst):
        put(sl, x)

    kmf = [smfs(KA + 4 * et, MEM + 4 * kk, wop("k", kk, et)) for kk in range(8) for et in range(2)]
    sx = P["sx_at"]
    lo = [f"ds_read_b64_tr_b16 {vr(QA + 4 * hi + 2 * jh, 2)}, {vr(V_R2)} offset:{256 * hi + 64 * jh}" for hi in range(2) for jh in range(2)]
    km2 = [(f"WAITL {ref1[4 * (kk - 2) + 2 * et + 1]}\n" if kk in (2, 3) else "") + kmf[2 * kk + et] for kk, et in order(P["k_split"], P["k_order"])]
    mf += km2[:sx]
    mf.append(f"WAITL {lo[1]}\nv_mfma_f32_16x16x32_bf16 {vr(TMP,4)}, {vr(KXF,4)}, {vr(QA,4)}, 0")
    mf.append(f"WAITL {lo[3]}\nv_mfma_f32_16x16x32_bf16 {vr(TMP,4)}, {vr(KXF + 4, 4)}, {vr(QA + 4, 4)}, {vr(TMP,4)}")
    mf += km2[sx:]
    for sl, x in zip(P["ref2_at"], ref2):
        put(sl, x)
    qp = fold(pkq, QA, TMP, True) + fold(pkq, QA + 4, TMP + 1, True)
    qp += [f"ds_write2_b32 {vr(V_W2)}, {vr(TMP)}, {vr(TMP + 1)} offset0:{o} offset1:{o + 32}" for o in (0, 65)] + lo + [
        f"ds_write2st64_b32 {vr(V_QW)}, {vr(TMP)}, {vr(TMP + 1)} offset0:{L_Q // 256} offset1:{L_Q // 256 + 1}"]
    for sl, x in sorted(zip(P["qp_at"], qp), key=lambda t: t[0]):
        put(sl, x)
    n1 = 16 + sx
    n2 = len(mf)
    rest = [(f"WAITL {ref2[4 * (kk - 6) + 2 * et + 1]}\n" if kk > 5 else "") + vmf([kk])[et]
            for kk, et in order(P["v_split"], P["v_order"])]
    for T, sl in enumerate(P["kld_at"]):
        put(sl, f"buffer_load_dwordx4 {vr(KXF + 4 * T, 4)}, {vr(V_VX)}, {ws}, s{S_T2} offen offset:{T * 256} sc1")
    put(P["sp_at"], f"ds_write_b128 {vr(V_SPW)}, {vr(TMP,4)} offset:{L_SP}")
    kp = fold(pkq, KA, KA + 2) + fold(pkq, KA + 4, KA + 3)
    for sl, x in sorted(zip(P["kp_at"], kp + [kwrite]), key=lambda t: t[0]):
        put(sl, x)
    vp = fold(False, VA, VP) + fold(pkv, VA + 4, VP + 2)
    nvp = len(P["vp_at"])
    for sl, x in zip(P["vp_at"], vp):
        put(sl, x)
    bar = P["bar_at"]
    post = [f"ds_read_b128 {vr(MEM + 4 * i, 4)}, {vr(V_L16)} offset:{L_SP + i * 1024}" for i in range(4)]
    post += [f"ds_read_b64_tr_b16 {vr(dst + 4 * ks + 2 * jh, 2)}, {vr(V_TRQ)} offset:{buf + 128 * ks + 64 * jh}"
             for ks in range(2) for jh in range(2) for dst, buf in ((KA, L_K), (QA, L_Q))]
    allpost = list(post)
    l1 = [f"v_add_f32 {vr(MEM + b + r)}, {vr(MEM + b + r)}, {vr(MEM + b + 4 + r)}" for b in (0, 8) for r in range(4)]
    for k, sl in enumerate(P["l1_at"]):
        if k in (0, 4):
            put(sl, f"WAITL {post[1 + k // 2]}")
        put(sl, l1[k])
    put(n2 + bar - P["km_back"], kvm_stores()[1] + f"\ns_add_u32 s{S_KMO}, s{S_KV}, {hex(KM)}")
    put(n2 + bar, f"WAITL {kwrite}\ns_barrier ; nocheck")
    for i in range(len(rest) - 1 - bar):
        take, post = post[:P["post_per"]], post[P["post_per"]:]
        put(n2 + bar + i, *take)
    mf += rest
    for k, nm in ((1, "q0"), (16, "qend"), (n1, "sxpre"), (n2, "kend"), (n2 + bar, "b2pre"), (n2 + bar + 1, "b2post")):
        mf[k] = stamp_s(nm) + "\n" + mf[k]
    weave(a, mf, fill)
    for x in post:
        a(x)
    stamp(a, "vend")
    smm = [f"WAITL {allpost[7]}\nv_mfma_f32_16x16x32_bf16 {vr(TMP + 4, 4)}, {vr(KA,4)}, {vr(QA,4)}, 0",
           f"WAITL {allpost[11]}\nv_mfma_f32_16x16x32_bf16 {vr(TMP + 4, 4)}, {vr(KA + 4, 4)}, {vr(QA + 4, 4)}, {vr(TMP + 4, 4)}"]
    exps = [f"v_exp_f32 {vr(EX + r)}, {vr(TMP + r)}" for r in range(4)]
    p1 = [f"v_pk_add_f32 {vr(MEM + b + h, 2)}, {vr(MEM + b + h, 2)}, {vr(MEM + b + 4 + h, 2)}" for b in (0, 8) for h in (0, 2)]
    p2 = [f"v_pk_add_f32 {vr(TMP + h, 2)}, {vr(MEM + h, 2)}, {vr(MEM + 8 + h, 2)}" for h in (0, 2)]
    a(f"WAITL {allpost[3]}")
    seq = p1[len(P["l1_at"]) // 2:] + p2 + [smm[0], exps[0], smm[1]] + exps[1:]
    for x in seq:
        a(x)
    stamp(a, "sum")
    a(f"v_cvt_pk_bf16_f32 {vr(QA)}, {vr(EX)}, {vr(EX + 1)}")
    a(vp[nvp])
    a(f"v_cvt_pk_bf16_f32 {vr(QA + 1)}, {vr(EX + 2)}, {vr(EX + 3)}")
    for x in vp[nvp + 1:]:
        a(x)
    for j in range(2):
        a(f"v_mov_b32_dpp {vr(QA + 2 + j)}, {vr(QA + j)} {QP}")
    for j in range(2):
        a(f"v_add_f32_dpp {vr(TMP + 4 + j)}, {vr(TMP + 6 + j)}, {vr(TMP + 4 + j)} {QP}")
    stamp(a, "pvpre")
    a(f"WAITV {rmre}".rstrip())
    if P.get("drop"):
        a("s_waitcnt vmcnt(3)")
    stamp(a, "pvgo")

    def pv_x():
        return [f"v_mfma_f32_16x16x32_bf16 {vr(LA,4)}, {vr(ONE,4)}, {vr(QA,4)}, 0",
                f"v_mfma_f32_16x16x32_bf16 {vr(VA,4)}, {vr(VXF,4)}, {vr(QA,4)}, 0",
                f"v_mfma_f32_16x16x32_bf16 {vr(VA + 4, 4)}, {vr(VXF + 4, 4)}, {vr(QA,4)}, 0"]

    def pv_m():
        return [f"v_mfma_f32_16x16x32_bf16 {vr(LA,4)}, {vr(ONE,4)}, {vr(EM + 2, 4)}, {vr(LA,4)}",
                f"v_mfma_f32_16x16x32_bf16 {vr(VA,4)}, {vr(VP,4)}, {vr(EM + 2, 4)}, {vr(VA,4)}",
                f"v_mfma_f32_16x16x32_bf16 {vr(VA + 4, 4)}, {vr(VP,4)}, {vr(EM,4)}, {vr(VA + 4, 4)}"]
    chk = [f"v_max3_f32 {vr(TMP + 6)}, |{vr(TMP)}|, |{vr(TMP + 1)}|, |{vr(TMP + 2)}|",
           f"v_max3_f32 {vr(TMP + 7)}, |{vr(TMP + 3)}|, |{vr(TMP + 4)}|, |{vr(TMP + 5)}|",
           f"v_max_f32 {vr(TMP + 6)}, {vr(TMP + 6)}, {vr(TMP + 7)}",
           f"v_cmp_ngt_f32 vcc, {f32(16.0)}, {vr(TMP + 6)}"]
    weave(a, pv_x() + pv_m(), {
        0: [f"v_exp_f32 {vr(EX)}, {vr(TMP + 4)}"],
        1: [f"v_exp_f32 {vr(EX + 1)}, {vr(TMP + 5)}"],
        2: [f"v_cvt_pk_bf16_f32 {vr(EM + 2)}, {vr(EX)}, {vr(EX + 1)}"] + chk[:2],
        3: chk[2:], 4: [], 5: [f"s_cbranch_vccnz {name}_max" if "skip" not in P else "s_cbranch_execz L_exit"]})
    a(f"{name}_pv:")
    stamp(a, "pvend")

    def true_max():
        m, t = vr(TMP + 6), vr(TMP + 7)
        a(f"{name}_max:")
        for j in range(2):
            a(f"v_mov_b32_dpp {vr(TMP + 4 + j)}, {vr(TMP + 4 + j)} quad_perm:[0,1,0,1] {DPP}")
        a(f"v_max3_f32 {m}, {vr(TMP)}, {vr(TMP + 1)}, {vr(TMP + 2)}")
        a(f"v_max3_f32 {t}, {vr(TMP + 3)}, {vr(TMP + 4)}, {vr(TMP + 5)}")
        a(f"v_max_f32 {m}, {m}, {t}")
        a(f"v_max_f32_dpp {m}, {m}, {m} {QP}")
        for sw in ("v_permlane16_swap_b32", "v_permlane32_swap_b32"):
            a(f"v_mov_b32 {t}, {m}")
            a(f"{sw} {m}, {t}")
            a(f"v_max_f32 {m}, {m}, {t}")
        for r in range(6):
            a(f"v_sub_f32 {vr(TMP + r)}, {vr(TMP + r)}, {m}")
            a(f"v_exp_f32 {vr(TMP + r)}, {vr(TMP + r)}")
        for j in range(2):
            a(f"v_cvt_pk_bf16_f32 {vr(QA + j)}, {vr(TMP + 2 * j)}, {vr(TMP + 2 * j + 1)}")
        a(f"v_cvt_pk_bf16_f32 {vr(EM + 2)}, {vr(TMP + 4)}, {vr(TMP + 5)}")
        for j in range(2):
            a(f"v_mov_b32_dpp {vr(QA + 2 + j)}, {vr(QA + j)} {QP}")
        for x in pv_x() + pv_m():
            a(x)
        a("s_nop 7")
        a(f"s_branch {name}_pv")
    cold.append(true_max)
    a(f"v_rcp_f32 {vr(TMP)}, {vr(LA)}")
    for et in range(2):
        if pkv:
            for j in range(2):
                a(f"v_pk_mul_f32 {vr(VA + 4 * et + 2 * j, 2)}, {vr(VA + 4 * et + 2 * j, 2)}, {vr(TMP,2)} op_sel_hi:[1,0]")
        else:
            for j in range(4):
                a(f"v_mul_f32 {vr(VA + 4 * et + j)}, {vr(VA + 4 * et + j)}, {vr(TMP)}")
        for j in range(2):
            a(f"v_cvt_pk_bf16_f32 {vr(QA + 2 * et + j)}, {vr(VA + 4 * et + 2 * j)}, {vr(VA + 4 * et + 2 * j + 1)}")
        if not P["ow2"]:
            a(f"ds_write_b64 {vr(V_OW)}, {vr(QA + 2 * et, 2)} offset:{256 * et}")
    if P["ow2"]:
        a(f"ds_write2_b64 {vr(V_OW)}, {vr(QA,2)}, {vr(QA + 2, 2)} offset0:0 offset1:32")
    stamp(a, "owr")
    for h in range(2):
        if h < P["zero_valu"]:
            for j in range(8):
                a(f"v_mov_b64 {vr(MEM + 16 * h + 2 * j, 2)}, 0")
        else:
            a(f"v_mfma_f32_32x32x16_bf16 {vr(MEM + 16 * h, 16)}, {vr(ZQ,4)}, {vr(ZQ,4)}, 0")
    rein3 = []
    if P["pub_at"][4] is None and P["rein_end"] < 2:
        a(f"v_mov_b64 {vr(VA,2)}, -1")
        a(f"v_mov_b64 {vr(VA + 2, 2)}, -1")
        rein3 = [f"buffer_store_dwordx4 {vr(VA,4)}, {vr(V_L16)}, {ws}, s{S_T1} offen offset:{16 * SEG[0]} {st}"]
    for tp in range(1, 4):
        if SEG[0] > 64 or tp == 2:
            a(f"s_add_u32 s{PSO[tp]}, s{S_RPC}, {tp * 32 * SEG[0]}")
    busy = lambda d: f"v_mfma_f32_16x16x32_bf16 {vr(d,4)}, {vr(KXF,4)}, {vr(KXF,4)}, 0 ; nocheck"
    for k in range(P["busy_b3"][0]):
        a(busy(VA + 4))
    a("s_waitcnt lgkmcnt(0)")
    a("s_barrier")
    stamp(a, "b3")
    for kk in range(2):
        a(f"ds_read_b128 {vr(QA + 4 * kk, 4)}, {vr(V_L16)} offset:{L_O + kk * 1024}")
    r3 = [ref3[i] for i in (0, 1, 4, 5, 2, 3, 6, 7)]
    for x in rein3 + r3[:P["ref3_pre"]]:
        a(x)
    for k in range(P["busy_b3"][1]):
        a(busy(VA + 4))
    mf, fill = [], {}
    outs = {0: TMP, 1: TMP + 2, 2: KA, 3: KA + 2}

    def wpost(tp):
        o = outs[tp]
        return zip2(fold(pko, MEM + 8 * tp, o), fold(pko, MEM + 8 * tp + 4, o + 1)) + [
            f"buffer_store_dwordx2 {vr(o,2)}, {vr(V_PS)}, {ws}, s{PSO[tp] if SEG[0] > 64 else PSO[tp & 2]} offen offset:{0 if SEG[0] > 64 else (tp & 1) * 2048} {st}"]
    for t in range(8):
        for kk in range(2):
            mf.append(smfs(MEM + 4 * t, QA + 4 * kk, wop("o", kk, t & 1, t >> 1)))
    for kk in range(2):
        mf[kk] = f"WAITL ds_read_b128 {vr(QA + 4 * kk, 4)}, {vr(V_L16)} offset:{L_O + kk * 1024}\n" + mf[kk]
    fill = {sl: [f"s_nop {n}"] for sl, n in P["w_nop"]}
    for k, x in enumerate(r3[P["ref3_pre"]:]):
        fill.setdefault(k * P["ref3_step"], []).append(x)
    for k, i in enumerate((1, 5, 3, 7)):
        mf[12 + k] = f"WAITL {ref3[i]}\n" + mf[12 + k]
    tailv = []
    for t in range(8):
        o = outs[t >> 1] + (t & 1)
        ops = fold(False, MEM + 4 * t, o)
        for k, x in enumerate(ops + ([wpost(t >> 1)[-1]] if t & 1 else [])):
            sl = 2 * t + P["w_lag"] + (0 if k < P["wsplit"] else 1 if k < 3 else P["w_st"])
            if sl > 15:
                tailv.append(x)
            else:
                fill.setdefault(sl, []).append(x)
    weave(a, mf, fill)
    for x in tailv:
        a(x)
    stamp(a, "wo")
    a.skip = set()
    H1, SEL, RED, H2B, CT, CT2 = (MEM, MEM + 16), MEM + 8, MEM + 12, MEM + 24, MEM + 24, MEM + 13
    a.idle = {0: None, 1: "sleep", 2: f"v_mfma_f32_16x16x32_bf16 {vr(MEM + 28, 4)}, {vr(KXF,4)}, {vr(KXF,4)}, 0 ; nocheck"}[P["idle"]]
    for w in (3, 2, 1):
        a(f"s_cmp_eq_u32 s{S_W}, {w}")
        a(f"s_cbranch_scc1 {name}_w{w}")
    for w in range(4):
        tag = f"{name}_w{w}"
        a(f"{tag}:")
        selrd = f"ds_read_b128 {vr(SEL,4)}, {vr(V_L16)} offset:{L_SEL}"
        work = [selrd] + kown + wl_list(ST, 0) + wl_list(ST + 16, 1)
        zero = [f"v_mov_b64 {vr(x + 2 * j, 2)}, 0" for x in (QA, VA) for j in range(4)]
        zero += [f"v_mov_b64 {vr(KA + 2 * j, 2)}, 0" for j in range(2)] + [f"v_mov_b64 {vr(TMP + 2 * j, 2)}, -1" for j in range(2)]
        work = work[:4] + zip2(work[4:], zero[:8]) + zero[8:]

        def issue1(b):
            for i in range(2):
                a(f"buffer_load_dwordx4 {vr(b + 4 * i, 4)}, {vr(V_L16)}, {ws}, s{S_RPL} offen offset:{i * 16 * SEG[0]} sc1")

        def use1(b, left):
            if left is not None:
                a(f"s_waitcnt vmcnt({left + 1})")
            a(f"v_mfma_f32_16x16x32_bf16 {vr(RED,4)}, {vr(SEL,4)}, {vr(b,4)}, 0 ; nocheck")
            if left is not None:
                a(f"s_waitcnt vmcnt({left})")
                stamp(a, "h1a")
            a(f"v_mfma_f32_16x16x32_bf16 {vr(RED,4)}, {vr(SEL,4)}, {vr(b + 4, 4)}, {vr(RED,4)} ; nocheck")
            a("s_nop 7")
            for rot in (4, 8):
                for j in range(2):
                    a(f"v_add_f32_dpp {vr(RED + j)}, {vr(RED + j)}, {vr(RED + j)} row_ror:{rot} {DPP}")
                if rot == 4:
                    a(f"v_cmp_u_f32 vcc, {vr(RED + 2)}, {vr(RED + 2)}")
            a(f"v_cvt_pk_bf16_f32 {vr(RED)}, {vr(RED)}, {vr(RED + 1)}")
        n1 = P["n1"][w]
        pace = P["pace"] if st == "" else ()
        TA = MEM + 28
        probe = f"buffer_load_dword {vr(TA + 2)}, {vr(TA)}, {ws}, s{S_TK} offen sc1"
        tick = []
        if pace:
            a(f"v_lshrrev_b32 {vr(TA)}, 2, {vr(V_L16)}")
            a(f"v_mov_b32 {vr(TA + 1)}, s{S_T3}")
            tick = [f"s_mov_b64 exec, {sr(S_TWO,2)}", f"buffer_store_dword {vr(TA + 1)}, {vr(TA)}, {ws}, s{S_TKH} offen", "s_mov_b64 exec, -1"]
        later = poll_issue(a, tag + "_h1", issue1, H1[:n1], max(0, P["d1"][w] - (20 if pace else 0)), P["g1"], work, tick,
                           [(t, probe) for t in pace])
        a(f"WAITL {selrd}")
        use1(H1[0], len(later))
        a(f"s_cbranch_vccnz {tag}_h1_miss")
        a(f"{tag}_h1_got:")

        def true_nan(b, tag=tag):
            check(a, b, CT)
            a(f"s_cbranch_vccz {tag}_h1_got")
        cold.append(lambda tag=tag, issue1=issue1, use1=use1, true_nan=true_nan: pingpong(
            a, tag + "_h1", issue1, use1, H1, true_nan, P.get("count") and "s_add_u32 s100, s100, 1"))
        a(f"buffer_store_dword {vr(RED)}, {vr(V_MS)}, {ws}, s{S_RMO} offen {st}")
        stamp(a, "h1")
        if pace:
            pos = [k for k, e in enumerate(later) if e == probe]
            for k in pos:
                a(f"s_waitcnt vmcnt({len(later) - k})")
                a(f"v_cmp_gt_u32 vcc, s{S_T3}, {vr(TA + 2)} ; nocheck")
                a(f"s_cbranch_vccz {tag}_paced")
                if P.get("count"):
                    a("s_add_u32 s98, s98, 1")
            for k in range(2):
                a(probe)
                a.nops(P["pgap"])
            a(f"{tag}_pace:")
            a(probe)
            a("s_waitcnt vmcnt(2)")
            a(f"v_cmp_gt_u32 vcc, s{S_T3}, {vr(TA + 2)} ; nocheck")
            a(f"s_cbranch_vccz {tag}_paced")
            if P.get("count"):
                a("s_add_u32 s98, s98, 0x100")
            timeout(a, f"{tag}_pace")
            a(f"{tag}_paced:")

        def issue2(b):
            for i in range(2):
                a(f"buffer_load_dwordx4 {vr(b + 4 * i, 4)}, {vr(V_L16)}, {ws}, s{S_RML} offen offset:{i * 16 * SEG[0]} sc1")

        def use2(b, left):
            for i in range(2):
                if left is not None:
                    a(f"s_waitcnt vmcnt({left + 1 - i})")
                a(f"ds_write_b128 {vr(V_MW)}, {vr(b + 4 * i, 4)} offset:{L_MEM + i * 1024} ; nocheck")
            if left is not None:
                stamp(a, "h2a")
                check(a, b, CT2)
        work = [f"s_xor_b32 s{S_RPC}, s{S_RPC}, 0x80000", f"s_xor_b32 s{S_RMO}, s{S_RMO}, 0x4000",
                f"s_add_u32 s{S_KV}, s{S_KV}, 0x8000", f"s_add_u32 s{S_S}, s{S_S}, 1", f"s_mov_b32 s{S_T1}, s{S_RPL}", f"s_xor_b32 s{S_RPL}, s{S_RPL}, 0x80000",
                *([f"v_cmp_eq_u32 {sr(S_KVM,2)}, 1, {vr(V_TD)}", f"v_lshrrev_b32 {vr(MEM + 28)}, 2, {vr(V_L16)}"] if P["kv_async"] else []),
                f"s_add_u32 s{S_T3}, s{S_S}, 1", f"s_add_u32 s{S_T2}, s{S_KV}, 0x8000", f"s_min_u32 s{S_T3}, s{S_T3}, 63",
                f"s_bitcmp1_b64 {sr(S_KVM,2)}, s{S_T3}\ns_cbranch_scc0 {tag}_kv\n{tag}_kv_ok:"]
        cold.append(lambda tag=tag: (a(f"{tag}_kv:"), kv_poll(a, tag + "_kv", S_T3, CT2)))
        n2 = P["n2"][w]
        H2 = (H2B, VXF) if n2 == 2 else (VXF,)
        poll_issue(a, tag + "_h2", issue2, H2, P["d2"][w], P["g2"], work)
        use2(H2[0], 2 * (n2 - 1))
        a(f"s_cbranch_vccnz {tag}_h2_miss")
        a(f"{tag}_h2_got:")

        cold.append(lambda tag=tag, issue2=issue2, use2=use2, H2=H2: pingpong(
            a, tag + "_h2", issue2, use2, H2, lambda b: None, P.get("count") and "s_add_u32 s100, s100, 0x10000"))
        stamp(a, "h2")
        if P["rein_end"]:
            for x in rein[:P["rein_end"]]:
                a(x)
        stamp(a, "pub")
        if P.get("series"):
            a("s_waitcnt lgkmcnt(0)")
            a(f"s_lshl_b32 s38, s2, 2")
            a(f"s_add_u32 s38, s38, {w}")
            a("s_lshl_b32 s38, s38, 11")
            a(f"s_lshl_b32 s37, s{S_S}, 5")
            a("s_add_u32 s38, s38, s37")
            a(f"s_add_u32 s38, s38, {hex(TRACE + 0x100000 - 32)}")
            for i in range(7):
                a(f"v_mov_b32 {vr(MEM + i)}, s{88 + 2 * i}")
            a(f"v_mov_b32 {vr(MEM + 7)}, s{S_TO}")
            if P.get("count"):
                a("s_mov_b32 s100, 0")
                a("s_mov_b32 s98, 0")
            a("s_mov_b64 exec, 1")
            a(f"buffer_store_dwordx4 {vr(MEM, 4)}, off, {ws}, s38")
            a(f"buffer_store_dwordx4 {vr(MEM + 4, 4)}, off, {ws}, s38 offset:16")
            a("s_mov_b64 exec, -1")
        a(f"s_xor_b32 s{S_RML}, s{S_RML}, 0x4000")
        a(f"s_cmp_lt_u32 s{S_S}, {P.get('steps', 63)}")
        a(f"s_cbranch_scc1 {name}")
        a(f"s_branch {name}_last")
    a.idle = None
    for f in cold:
        f()
    a(f"{name}_last:")
    a("s_waitcnt lgkmcnt(0)")
    a("s_barrier")
    mark(a, 3, QA)
    a("s_waitcnt vmcnt(0)")
    for x in memrd:
        a(x)
    publish_kvm(a)
    a(f"s_add_u32 s{S_KMO}, s{S_KV}, {hex(KM)}")
    a(f"v_mov_b64 {vr(KA + 4, 2)}, 0")
    a(f"v_mov_b64 {vr(KA + 6, 2)}, 0")
    for x in ref1:
        a(x)
    for kk in (0, 1, 4, 5, 6, 7, 2, 3):
        a(f"WAITL {memrd[kk] if kk not in (2, 3) else ref1[4 * (kk - 2) + 3]}")
        for x in kmf[2 * kk:2 * kk + 2]:
            a(x)
    vm6 = vmf(range(6))
    weave(a, vm6, {0: ref2[:2], 1: ref2[2:4], 2: ref2[4:6], 3: ref2[6:] + kp[:1], 4: kp[1:3], 5: kp[3:5], 6: kp[5:], 7: [kwrite, kown[0]], 8: kown[1:]})
    a(f"WAITL {ref2[7]}")
    for x in vmf([6, 7]):
        a(x)
    a("s_waitcnt lgkmcnt(0)")
    a(kvm_stores()[1])
    for x in vp:
        a(x)
    a(kvm_stores()[0])
    mark(a, 4, QA)
    for i in range(6):
        mark(a, 8 + i, QA, 28 + i)
    mark(a, 14, QA, S_TO)
    if TRACE_ON[0] == 1:
        a("s_memtime s[36:37]")
        a("s_waitcnt lgkmcnt(0)")
        a("s_sub_u32 s36, s36, s34")
        mark(a, 15, QA, 36)
    a("s_branch L_exit")


def recurrence(a, P):
    SEG[0] = P["seg"]
    NOSW[0] = P.get("nosw", 0)
    a("L_recur:")
    a(f"s_lshr_b32 s{S_H}, s2, 3")
    if P.get("h_xor"):
        a(f"s_xor_b32 s{S_H}, s{S_H}, {P['h_xor']}")
    mark(a, 0, 100)
    for i in range(8):
        if TRACE_ON[0] == 1:
            a(f"s_mov_b32 s{28 + i}, 0")
    if P.get("r_exit"):
        a("s_branch L_exit")
    lane_ids(a)
    setup_staging(a)

    def meanwhile():
        setup(a)
        init_handoffs(a)
        srd(a, SRD_B, P_MEM0, 8 * 1024)
        a(f"v_lshrrev_b32 v100, 4, {vr(V_SPW)}")
        a("v_bfe_u32 v101, v100, 2, 2")
        a("v_and_b32 v102, 1, v100")
        a("v_lshl_add_u32 v101, v101, 1, v102")
        a("v_bfe_u32 v102, v100, 1, 1")
        a("v_lshrrev_b32 v100, 4, v100")
        a("v_lshl_add_u32 v100, v100, 1, v102")
        a("v_lshlrev_b32 v100, 4, v100")
        a("v_lshl_add_u32 v100, v101, 10, v100")
        for i in range(2):
            a(f"buffer_load_dwordx4 {vr(QA + 4 * i, 4)}, v100, {sr(SRD_B,4)}, 0 offen offset:{i * 512}")

    def ask_arrival():
        a(f"s_mov_b32 s{S_S}, 0")
        a(f"s_lshl_b32 s{S_KV}, s{S_H}, 21")
        a(f"s_mov_b32 s{S_KMO}, {hex(OOB)}")
        a(f"s_lshl_b32 s{S_FKO}, s{S_H}, 10")
        a(f"s_lshl_b32 s{S_T0}, s{S_W}, 8")
        a(f"s_add_u32 s{S_FKO}, s{S_FKO}, s{S_T0}")
        a(f"s_add_u32 s{S_FKO}, s{S_FKO}, {hex(FKV)}")
        a(f"buffer_load_dword v100, off, {sr(SRD_C,4)}, 0 sc1")

    def ask_flags():
        a(f"v_readfirstlane_b32 s{S_T0}, v100")
        a(f"s_cmp_ge_u32 s{S_T0}, 256")
        a("s_cbranch_scc1 L_rarr")
        wait_all_arrived(a, 100)
        a("L_rarr:")
        a(f"buffer_load_dword v100, off, {sr(SRD_C,4)}, 0 offset:128 sc1")
        a(f"v_lshrrev_b32 v101, 2, {vr(V_L16)}")
        a(f"buffer_load_dword {vr(V_TD)}, v101, {sr(SRD_WS,4)}, s{S_FKO} offen sc1")

    def warm_text():
        if P["text_at"] > 0:
            a("s_getpc_b64 s[30:31]")
            a("L_pc:")
            a("s_add_u32 s30, s30, L_rfast-L_pc")
            a("s_addc_u32 s31, s31, 0")
            a(f"v_lshlrev_b32 v103, 2, {vr(V_SPW)}")
            a("global_load_dword v103, v103, s[30:31]")

    def ask_keys():
        a(f"v_cmp_eq_u32 {sr(S_KVM,2)}, 1, {vr(V_TD)}")
        a(f"s_bitcmp1_b64 {sr(S_KVM,2)}, s{S_S}")
        a("s_cbranch_scc1 L_kv0_ok")
        kv_poll(a, "L_kv0", S_S, 101)
        a("L_kv0_ok:")
        a(f"s_mov_b32 s{S_T3}, 1")
        a(f"s_bitcmp1_b64 {sr(S_KVM,2)}, s{S_T3}")
        a("s_cbranch_scc1 L_kv1_ok")
        kv_poll(a, "L_kv1", S_T3, 101)
        a("L_kv1_ok:")
        for T in range(2):
            a(f"buffer_load_dwordx4 {vr(KXF + 4 * T, 4)}, {vr(V_VX)}, {sr(SRD_WS,4)}, s{S_KV} offen offset:{T * 256} sc1")

    load_weights(a, meanwhile, 9, {P["ask_at"]: ask_arrival, P["ask_at"] + 8: ask_flags, P["free_at"]: lambda: arrive(a, 125, 64), P["text_at"]: warm_text, 31: ask_keys if not P.get('f_none') else (lambda: (mark(a, 1, 104), a('s_branch L_exit')))}, P['w_order'], P['w_depth'])
    for i in range(2):
        a(f"ds_write_b128 {vr(V_SPW)}, {vr(QA + 4 * i, 4)} offset:{L_MEM + i * 4096}")
    mark(a, 1, 104)
    a(f"v_readfirstlane_b32 s{S_T4}, v100")
    a(f"s_mov_b32 s{S_ONE}, 0x3f803f80")
    a(f"s_mov_b32 s{S_ONE + 1}, 0x3f803f80")
    a(f"s_mov_b32 s{S_CC}, {C_EXP}")
    a(f"s_mov_b32 s{S_CC + 1}, {C_EXP}")
    a(f"s_mul_i32 s{S_RML}, s{S_W}, {32 * SEG[0]}")
    a(f"s_add_u32 s{S_RML}, s{S_RML}, {hex(RM + 0x4000)}")
    if P["kv_async"]:
        a(f"v_lshrrev_b32 {vr(MEM + 28)}, 2, {vr(V_L16)}")
    else:
        a(f"s_and_b32 s{S_KVM}, s{S_KVM}, {hex((1 << P['kv_again']) - 1)}")
        a(f"s_mov_b32 s{S_KVM + 1}, 0")
    a("s_waitcnt lgkmcnt(0)")
    wl_chunk(a, ST, 0)
    wl_chunk(a, ST + 16, 1)
    for j in range(12):
        a(f"v_mov_b64 {vr(QA + 2 * j, 2)}, 0")
    a(f"v_mov_b64 {vr(TMP,2)}, -1")
    a(f"v_mov_b64 {vr(TMP + 2, 2)}, -1")
    a(f"s_xor_b32 s{S_T1}, s{S_RPL}, 0x80000")
    a(f"s_add_u32 s{S_T2}, s{S_KV}, 0x8000")
    a("s_waitcnt vmcnt(0) lgkmcnt(0)")
    mark(a, 2, 100)
    if TRACE_ON[0] == 1:
        a("s_memtime s[34:35]")
        for i in range(7):
            a(f"s_mov_b32 s{88 + 2 * i}, 0")
    a(f"s_bcnt1_i32_b32 s{S_T4}, s{S_T4}")
    a(f"s_cmp_eq_u32 s{S_T4}, 1")
    if P.get("force_slow"):
        a("s_branch L_rslow")
    a("s_cbranch_scc0 L_rslow")
    step_loop(a, "L_rfast", "", P)
    step_loop(a, "L_rslow", "sc1", dict(P, **P["slow"]))
```

```python
import sys
from asmlib import Asm, vr, ar, sr
from common import *
from follower import follower
from recur import *

DEFAULT = dict(d1=(60, 100, 160, 220), n1=(2,) * 4, g1=140, d2=(200, 180, 200, 180), n2=(2,) * 4, g2=124, pkq=0, pkv=1, pko=0,
               mem_at=(0, 1, 3, 4, 5, 6), ref1_at=(7, 8, 19, 20, 10, 11, 21, 22), pub_at=(-1, 2, 6, 15, None, 12),
               rein_end=0, pace=(), pgap=40, seg=64, far_sleep=2, ring=1, calm=1, f3_rest=0, text_at=0, ow2=0, w_lag=5, w_st=2, w_nop=((2, 1),), zero_valu=0, slow=dict(d1=(700, 760, 830, 900), d2=(900,) * 4, g1=400, g2=400), warm='', far_one=0, yield_to=32, free_at=24, f1_slots=7, idle=0, code_warm=0, code_wait=0, spec_km=0, far_op='atomic', last_wait=0, near_sleep=(0, 0), prompt=1, f_slots=3, f3_window=0, busy_b3=(0, 0), busy_h=(0, 0), busy_top=0, kz_at=19, q_split=4, k_split=0, v_split=4,
               vp_at=(), l1_at=(), k_order=(0, 1, 4, 5, 6, 7, 2, 3), v_order=(0, 1, 2, 3, 6, 7, 4, 5),
               nop_at=((16, 1), (17, 1), (32, 0)),
               qp_at=(16, 17, 18, 19, 20, 18, 20, 20, 21, 22, 23, 24, 25, 26, 27, 28, 29),
               sx_at=16, ref2_at=(30, 31, 33, 34, 32, 35, 38, 39), kld_at=(36, 41), sp_at=36,
               kp_at=(27, 28, 30, 33, 34, 35, 37), cst_at=(44, 45, 46, 47, 48, 48), bar_at=6, kv_again=7, kv_async=0, ask_at=14,
               w_order='oqkv', w_depth=0, post_per=1, wsplit=1, km_back=3, ref3_pre=1, ref3_step=1)


def build(P, verbose=False, check=True):
    a = Asm()
    TRACE_ON[0] = int(P.get('trace', 0))
    TRACE_ON[1] = P.get('f3marks')
    a("L_entry:")
    a("s_cmp_ge_u32 s2, 256")
    a("s_cbranch_scc1 L_exit")
    a("s_load_dwordx16 s[40:55], s[0:1], 0")
    a("s_load_dwordx8 s[56:63], s[0:1], 64")
    a("s_load_dwordx4 s[64:67], s[0:1], 96")
    a("s_load_dwordx2 s[68:69], s[0:1], 112")
    if P["code_warm"]:
        a("s_getpc_b64 s[30:31]")
        a("s_and_b32 s30, s30, 0xffffff00")
        a("v_lshlrev_b32 v2, 7, v0")
        for k in range(P["code_warm"]):
            a(f"global_load_dword v{250 + k}, v2, s[30:31]")
            if k + 1 < P["code_warm"]:
                a("v_add_u32 v2, 0x8000, v2")
                a("v_min_u32 v2, L_exit-L_entry, v2")
    a("v_lshrrev_b32 v1, 6, v0")
    a(f"v_readfirstlane_b32 s{S_W}, v1")
    a(f"s_mov_b32 s{S_TO}, 0")
    a("s_waitcnt lgkmcnt(0)")
    srd(a, SRD_WS, P_WS, WS_BYTES)
    if P["code_warm"] and P["code_wait"]:
        a("s_waitcnt vmcnt(0)")
    a(f"s_and_b32 s{S_T0}, s2, 7")
    a(f"s_cmp_lg_u32 s{S_T0}, 0")
    a("s_cbranch_scc1 L_follower")
    recurrence(a, P)
    follower(a, P)
    a("L_exit:")
    a("s_endpgm")
    if P.get("drop"):
        import re
        inside, keep = False, []
        for k, x in a.items:
            if k == "label" and x == "L_rfast":
                inside = True
            if k == "label" and x == "L_rfast_w0":
                inside = False
            if inside and k == "ins" and any(re.search(p, x.text) for p in P["drop"]):
                continue
            keep.append((k, x))
        a.items = keep
    if P.get("fdrop"):
        import re
        inside, keep = False, []
        for k, x in a.items:
            if k == "label" and x == P.get("fdrop_from", "L_f3"):
                inside = True
            if k == "label" and x == P.get("fdrop_to"):
                inside = False
            if inside and k == "ins" and any(re.search(p, x.text) for p in P["fdrop"]):
                continue
            keep.append((k, x))
        a.items = keep
    n = a.pad_hazards(verbose)
    probs = a.check_waits() if check else []
    for p in probs:
        print("WAIT:", p)
    if P.get("strict") and any("counted lgkm" not in p for p in probs):
        raise ValueError("wait check failed")
    if P.get("align", 1):
        a.align8()
    print(f"instructions: {a.count()}, hazard pad states: {n}")
    ref = open(f"cdna_kernels/{NAME}.s.ref").read().split("\n")
    head = [l for l in ref if l.startswith(";") and "@launch" not in l and not l.startswith("    ")]
    out = "\n".join(head) + "\n; @launch grid=(256,1,1) block=(256,1,1) lds=163840\n"
    out += f'.amdgcn_target "amdgcn-amd-amdhsa--gfx950"\n.text\n.globl {NAME}_kernel\n.p2align 8\n.type {NAME}_kernel,@function\n{NAME}_kernel:\n'
    out += a.text()
    out += f'''.section .rodata,"a"
.p2align 6
.amdhsa_kernel {NAME}_kernel
  .amdhsa_next_free_vgpr 512
  .amdhsa_next_free_sgpr 102
  .amdhsa_accum_offset 256
  .amdhsa_group_segment_fixed_size 0
  .amdhsa_kernarg_size 120
  .amdhsa_user_sgpr_count 2
  .amdhsa_user_sgpr_kernarg_segment_ptr 1
  .amdhsa_system_sgpr_workgroup_id_x 1
  .amdhsa_float_denorm_mode_32 3
.end_amdhsa_kernel
'''
    return out


if __name__ == "__main__":
    P = dict(DEFAULT)
    path = f"cdna_kernels/{NAME}.s"
    verbose = False
    for arg in sys.argv[1:]:
        if arg == "-v":
            verbose = True
        elif arg.startswith("out="):
            path = arg[4:]
        else:
            k, v = arg.split("=")
            P[k] = eval(v)
    open(path, "w").write(build(P, verbose))
```
